```python
import torch

def _softmax(x, axis=-1):
    return torch.softmax(x, dim=axis)
def _gelu(x):
    return torch.nn.functional.gelu(x, approximate="tanh")
def _silu(x):
    return torch.nn.functional.silu(x)
def _sigmoid(x):
    return torch.sigmoid(x)
def _layernorm(x, axis=-1, eps=1e-5):
    m = x.mean(dim=axis, keepdim=True)
    v = x.var(dim=axis, keepdim=True, unbiased=False)
    return (x - m) / torch.sqrt(v + eps)
def _scatter_add(tgt, idx, src, axis=0):
    return tgt.clone().index_add_(axis, idx, src)
def _segment_sum(src, seg, n):
    out = torch.zeros((n,) + src.shape[1:], dtype=src.dtype)
    return out.index_add_(0, seg, src)
def _pad(x, pw):
    flat = tuple(v for pair in reversed(pw) for v in pair)
    return torch.nn.functional.pad(x, flat)

kernel_name = 'interleave_layers__sliding_block__glu_gated_swiglu__prompt'

def setup_inputs():

    _w = (lambda a: (lambda t: t.to(torch.bfloat16) if t.is_floating_point() else t)(torch.as_tensor(a)))
    def _A_setup():
        B, S, D = 1, 2048, 640
        return {
            "x": _w((lambda *s: torch.randn(*s, dtype=torch.bfloat16) * 0.05)(B, S, D)),
            "wqkv": _w((lambda *s: torch.randn(*s, dtype=torch.bfloat16) * 0.05)(D, 3 * D)),
            "wo": _w((lambda *s: torch.randn(*s, dtype=torch.bfloat16) * 0.05)(D, D)),
        }
    _A_in = _A_setup()

    def _B_setup():
        B, S, D, F = 1, 2048, 640, 1728
        return {
            "x": _w((lambda *s: torch.randn(*s, dtype=torch.bfloat16) * 0.05)(B, S, D)),
            "w1": _w((lambda *s: torch.randn(*s, dtype=torch.bfloat16) * 0.8)(D, F) * (2.0 / D) ** 0.5),
            "w3": _w((lambda *s: torch.randn(*s, dtype=torch.bfloat16) * 0.8)(D, F) * (2.0 / D) ** 0.5),
            "w2": _w((lambda *s: torch.randn(*s, dtype=torch.bfloat16) * 0.8)(F, D) * (2.0 / F) ** 0.5),
        }
    _B_in = _B_setup()

    return {
        "A_x": _A_in["x"],
        "A_wqkv": _A_in["wqkv"],
        "A_wo": _A_in["wo"],
        "B_x": _B_in["x"],
        "B_w1": _B_in["w1"],
        "B_w3": _B_in["w3"],
        "B_w2": _B_in["w2"],
    }

def reference(A_x, A_wqkv, A_wo, B_x, B_w1, B_w3, B_w2):
    def _A_ref(x, wqkv, wo):
        B, S, D = x.shape
        H = 32; Dh = D // H; W = 256
        qkv = (lambda x, *d: x.permute(*d))((x @ wqkv).reshape(B, S, 3, H, Dh), 2, 0, 3, 1, 4)
        q, k, v = qkv[0], qkv[1], qkv[2]
        scores = torch.einsum("bhqd,bhkd->bhqk", q, k) * (Dh ** -0.5)
        idx = torch.arange(S)
        mask = (idx[:, None] - idx[None, :] >= 0) & (idx[:, None] - idx[None, :] < W)
        scores = torch.where(mask[None, None], scores, -1e9)
        p = _softmax(scores, axis=-1)
        o = torch.einsum("bhqk,bhkd->bhqd", p, v)
        return (lambda x, *d: x.permute(*d))(o, 0, 2, 1, 3).reshape(B, S, D) @ wo

    def _B_ref(x, w1, w3, w2):
        gate = torch.einsum("bsd,df->bsf", x, w1)
        up = torch.einsum("bsd,df->bsf", x, w3)
        h = _silu(gate) * up
        out = torch.einsum("bsf,fd->bsd", h, w2)
        return out

    x = A_x
    x = x + _A_ref(_layernorm(x, axis=-1), A_wqkv, A_wo)
    x = x + _B_ref(_layernorm(x, axis=-1), B_w1, B_w3, B_w2)
    x = x + _A_ref(_layernorm(x, axis=-1), A_wqkv, A_wo)
    x = x + _B_ref(_layernorm(x, axis=-1), B_w1, B_w3, B_w2)
    return x
```

```python
class Asm:
    def __init__(self):
        self.L = []; self.vq = []; self.lq = []; self.nl = 0
    def __call__(self, s):
        for ln in s.split("\n"):
            ln = ln.strip()
            if ln: self.L.append(("" if ln.endswith(":") or ln.startswith(".") or ln.startswith(";") else "  ")+ln)
    def lab(self, p="L"):
        self.nl += 1; return f"{p}_{self.nl}"
    def vm(self, s, tag=None):
        self(s); self.vq.append(tag)
    def vwait(self, tag):
        idx = [i for i, t in enumerate(self.vq) if t == tag]
        if not idx: return
        n = len(self.vq)-1-idx[-1]
        if n <= 63: self(f"s_waitcnt vmcnt({n})")
        self.vq = self.vq[idx[-1]+1:]
    def vwait_all(self):
        self("s_waitcnt vmcnt(0)"); self.vq = []
    def ds(self, s, tag=None):
        self(s); self.lq.append(tag)
    def lwait(self, tag):
        idx = [i for i, t in enumerate(self.lq) if t == tag]
        if not idx: return
        n = len(self.lq)-1-idx[-1]
        self(f"s_waitcnt lgkmcnt({min(n,15)})")
        self.lq = self.lq[idx[-1]+1:]
    def lwait_all(self):
        self("s_waitcnt lgkmcnt(0)"); self.lq = []
    def text(self): return "\n".join(self.L)+"\n"
def vr(b, n=4, t="v"): return f"{t}[{b}:{b+n-1}]" if n > 1 else f"{t}{b}"
def ar(b, n=4): return vr(b, n, "a")
def kdesc(name, nv, acc, ns=102):
    return f""".p2align 6
.amdhsa_kernel {name}
  .amdhsa_next_free_vgpr {nv}
  .amdhsa_next_free_sgpr {ns}
  .amdhsa_accum_offset {acc}
  .amdhsa_group_segment_fixed_size 0
  .amdhsa_kernarg_size 80
  .amdhsa_user_sgpr_count 2
  .amdhsa_user_sgpr_kernarg_segment_ptr 1
  .amdhsa_system_sgpr_workgroup_id_x 1
.end_amdhsa_kernel"""
```

```python
import re
RX = re.compile(r"\b([vas])\[(\d+):(\d+)\]|\b([vas])(\d+)\b|\b(vcc|m0|exec)\b")
def regs(op):
    out = set()
    for m in RX.finditer(op):
        if m.group(1): out |= {(m.group(1), i) for i in range(int(m.group(2)), int(m.group(3))+1)}
        elif m.group(4): out.add((m.group(4), int(m.group(5))))
        else: out.add((m.group(6), 0))
    return out
TRANS = ("v_exp_", "v_log_", "v_rcp_", "v_rsq_", "v_sqrt_", "v_sin_", "v_cos_")
def parse(ln):
    s = ln.split(";")[0].strip()
    if not s or s.endswith(":") or s.startswith("."): return None
    p = s.split(None, 1); op = p[0]; ops = [x.strip() for x in p[1].split(",")] if len(p) > 1 else []
    d = dict(op=op, w=set(), r=set(), kind="other", n=1)
    if op == "s_nop": d["n"] = int(ops[0])+1; return d
    if op.startswith("v_mfma"):
        d.update(kind="mfma", w=regs(ops[0]), ab=regs(ops[1]) | regs(ops[2]), c=regs(ops[3]), passes=8 if "32x32" in op else 4)
        d["r"] = d["ab"] | d["c"]
    elif op.startswith("v_"):
        d["kind"] = "valu"; d["w"] = regs(ops[0]); d["r"] = set().union(*[regs(o) for o in ops[1:]]) if len(ops) > 1 else set()
        if "fmac" in op or "dot2c" in op: d["r"] |= d["w"]
        if "permlane" in op: d["w"] |= regs(ops[1]); d["r"] |= d["w"]
    elif op.startswith("ds_read"):
        d.update(kind="mem", w=regs(ops[0]), r=regs(ops[1]))
    elif op.startswith("ds_"):
        d.update(kind="mem", r=set().union(*[regs(o) for o in ops]))
    elif op.startswith("buffer_") or op.startswith("global_"):
        d["kind"] = "mem"; d["vmem"] = True
        allr = [regs(o) for o in ops]
        if "load" in op and not s.endswith("lds"): d["w"] = allr[0]; d["r"] = set().union(*allr[1:])
        else: d["r"] = set().union(*allr)
        if s.endswith("lds"): d["r"].add(("m0", 0))
        if "store_dwordx4" in op or "store_dwordx3" in op: d["wide"] = allr[0]
    elif op.startswith("s_"):
        d["kind"] = "salu"
        if ops and not op.startswith(("s_cmp", "s_cbranch", "s_branch", "s_waitcnt", "s_barrier", "s_sleep", "s_setprio")): d["w"] = regs(ops[0])
    return d
def need(p, c):
    n = 0
    vec = lambda S: {x for x in S if x[0] in "va" and len(x[0]) == 1}
    sc = lambda S: {x for x in S if x[0] in ("s", "vcc")}
    if p["kind"] == "mfma":
        big = p["passes"] == 8
        if c["kind"] == "mfma":
            if p["w"] & c["ab"]: n = max(n, 12 if big else 8)
            if p["w"] & c["c"] and not (p["w"] == c["c"] and p["passes"] == c["passes"]): n = max(n, 10 if big else 6)
        elif c["kind"] in ("valu", "mem"):
            if p["w"] & (c["r"] | c["w"]): n = max(n, 12 if big else 8)
            if c["kind"] == "valu" and p["c"] & c["w"]: n = max(n, 7 if big else 3)
    elif p["kind"] == "valu":
        wv = vec(p["w"]); ws = sc(p["w"])
        if c["kind"] == "mfma" and wv & c["r"]: n = max(n, 2)
        if c["kind"] == "valu":
            if p["op"].startswith(TRANS) and not c["op"].startswith(TRANS) and wv & c["r"]: n = max(n, 1)
            if "permlane" in c["op"] and wv & c["r"]: n = max(n, 2)
            if "readfirstlane" in c["op"] or "readlane" in c["op"]:
                if wv & c["r"]: n = max(n, 1)
            if ws & c["r"]: n = max(n, 2)
            if "dot2" in p["op"] and c["op"] != p["op"] and wv & (c["r"] | c["w"]): n = max(n, 3)
        if c["kind"] == "mem":
            if c.get("vmem") and ws & c["r"]: n = max(n, 5)
            if "dot2" in p["op"] and wv & c["r"]: n = max(n, 3)
            if p["op"].startswith(TRANS) and wv & c["r"]: n = max(n, 1)
    elif p["kind"] == "salu":
        if ("m0", 0) in p["w"] and ("m0", 0) in c["r"]: n = max(n, 1)
    elif p.get("wide") and c["kind"] in ("valu", "mem", "mfma") and p["wide"] & c["w"]: n = max(n, 2)
    return n
def fix(lines):
    out = []; hist = []; added = 0
    for ln in lines:
        c = parse(ln)
        if c is None: out.append(ln); continue
        dist = 0; pad = 0
        for p in reversed(hist):
            if dist >= 12: break
            pad = max(pad, need(p, c)-dist)
            dist += p["n"]
        if pad > 0:
            out.append(f"  s_nop {pad-1}"); hist.append(dict(op="s_nop", w=set(), r=set(), kind="other", n=pad)); added += pad
        out.append(ln); hist.append(c); hist = hist[-16:]
    return out, added
```

```python
import numpy as np
S, D, F, H, DH = 2048, 640, 1728, 32, 20
def al(x, a=4096): return (x + a - 1)//a*a
off = {}
cur = 0
def alloc(name, n):
    global cur
    off[name] = cur; cur = al(cur + n)
alloc("FLAGS", 65536*2)
alloc("WQ", 16*163840)
alloc("WOF", 8*20*5*1024)
alloc("W13F", 16*280*1024)
alloc("W2F", 8*54*5*1024)
alloc("CSQ", 16*4*2*16*4)
alloc("CS13", 16*7*2*16*4)
XFSZ = 64*40*1024
STSZ = 8*2048*8
KVB = 5632
alloc("XF", 4*XFSZ)
alloc("ST", 4*STSZ)
KVXSZ = 16*64*KVB
alloc("KVX", 2*KVXSZ)
OFSZ = 128*80*256
alloc("OF", 2*OFSZ)
HFSZ = 128*216*256
alloc("HF", 2*HFSZ)
alloc("TS", 256*64*8)
WS_USED = cur
def qkv_chunk(q4):
    sec, r = divmod(q4, 160); head, dc = divmod(r, 5); g, hb = head >> 1, head & 1
    if dc < 4:
        if sec == 1: return g, 0, 16*hb+4*dc
        if sec == 2: return g, 1, 16*hb+4*dc
        return (g, 2, 16+4*dc) if hb == 0 else (g, 3, 4*dc)
    if sec == 1: return g, 2, 4*hb
    if sec == 2: return g, 2, 8+4*hb
    return g, 3, 16+4*hb
def w13_ct(ft):
    return (ft//7, ft % 7) if ft < 84 else (12+(ft-84)//6, (ft-84) % 6)
def w13_seq(lt, ks):
    if lt < 3: return ks*3+lt
    if lt < 5: return 120+ks*2+(lt-3)
    return 200+ks if lt == 5 else 240+ks
def ncol_chunk(q4):
    j, r = divmod(q4, 20)
    if r < 16: return j, 2*(r >> 3)+(r & 1), 4*((r & 7) >> 1)
    return j, 4, 4*(r-16)
def wo_rows(kg):
    g, s = divmod(kg, 5)
    if s < 4: b, d = 40*g+20*(s >> 1)+4*(s & 1), 8
    else: b, d = 40*g+16, 20
    return [b+i for i in range(4)]+[b+d+i for i in range(4)]
WO_KPERM = np.array([r for kg in range(80) for r in wo_rows(kg)])
def model_WQ(w):
    o = np.zeros(16*163840//2, np.uint16); v = np.zeros_like(o, bool)
    for q4 in range(480):
        g, t, m = qkv_chunk(q4)
        for kg in range(80):
            ks, h = kg >> 1, kg & 1
            fr = ks*3+t if t < 3 else 120+ks
            for i in range(4):
                a = (g*163840+fr*1024+(h*32+m+i)*16)//2
                o[a:a+8] = w[8*kg:8*kg+8, 4*q4+i]; v[a:a+8] = True
    return o, v
def model_W13(w1, w3):
    o = np.zeros(16*280*1024//2, np.uint16); v = np.zeros_like(o, bool)
    for s, w in enumerate((w1, w3)):
        for q4 in range(432):
            ft, fc = q4 >> 2, q4 & 3
            m = 4*[0, 2, 1, 3][fc]+16*s
            c, lt = w13_ct(ft)
            for kg in range(80):
                ks, h = kg >> 1, kg & 1
                for i in range(4):
                    a = (c*280*1024+w13_seq(lt, ks)*1024+(h*32+m+i)*16)//2
                    o[a:a+8] = w[8*kg:8*kg+8, 4*q4+i]; v[a:a+8] = True
    return o, v
def model_WN(w, nks):
    o = np.zeros(8*nks*5*512, np.uint16)
    for q4 in range(160):
        j, nt, m = ncol_chunk(q4)
        for kg in range(nks*4):
            for i in range(4):
                a = (((j*nks+(kg >> 2))*5+nt)*1024+((kg & 3)*16+m+i)*16)//2
                o[a:a+8] = w[8*kg:8*kg+8, 4*q4+i]
    return o
def to_XF(x):
    return x.reshape(64, 32, 40, 2, 8).transpose(0, 2, 3, 1, 4).reshape(-1)
def from_XF(a):
    return a.reshape(64, 40, 2, 32, 8).transpose(0, 3, 1, 2, 4).reshape(2048, 640)
def from_TF(a, nkg):
    return a.reshape(128, nkg, 16, 8).transpose(0, 2, 1, 3).reshape(2048, nkg*8)
def cs_index(m): return ((m >> 2) & 1)*16+4*(m >> 3)+(m & 3)
```

```python
from asmlib import *
import layout as Y
import struct
O = Y.off
def f32(x): return "0x%08x" % struct.unpack("<I", struct.pack("<f", x))[0]
LOG2E = 1.4426950408889634
WS = "s[8:11]"; OUT = "s[12:15]"
sI, sC, sW, sL, sJ, sTH = 16, 17, 18, 19, 20, 21
RES = 236
M32 = "v_mfma_f32_32x32x16_bf16"; M8 = "v_mfma_f32_32x32x8_bf16"; M16 = "v_mfma_f32_16x16x32_bf16"
CFG = dict(map="pair", ts=False)

def ldsaddr(byte):
    return 1+byte//65536, byte % 65536
def stamp(a, k):
    if not CFG["ts"]: return
    L = a.lab("TS")
    a(f"s_waitcnt lgkmcnt(0)\ns_cmp_lg_u32 s{sW}, 0\ns_cbranch_scc1 {L}\ns_memrealtime s[90:91]\ns_lshl_b32 s92, s2, 9\ns_lshl_b32 s93, s{sL}, 8\ns_add_u32 s92, s92, s93\ns_add_u32 s92, s92, {O['TS']+k*8}")
    a(f"s_waitcnt lgkmcnt(0)\nv_mov_b32 v234, s90\nv_mov_b32 v235, s91\ns_mov_b64 exec, 1\nbuffer_store_dwordx2 v[234:235], v4, {WS}, s92 offen\ns_mov_b64 exec, -1\ns_branch {L}x")
    a(f"{L}:\ns_mov_b32 s92, 0x7fffff00\nbuffer_store_dwordx2 v[234:235], v4, {WS}, s92 offen\n{L}x:")
    a.vq.append(None); a.lq = []
def dma(a, sbase, groups, lds0, tag, sc="", tmp=30):
    for go, lo, n in groups:
        a(f"s_add_u32 s{tmp}, s{sbase}, {go}")
        a(f"s_add_u32 m0, s{lds0}, {lo}")
        for q in range(n):
            a.vm(f"buffer_load_dwordx4 v1, {WS}, s{tmp} offen offset:{q*1024} {sc} lds".replace("  ", " "), tag)
def lin_loads(a, dst, sbase, rel, n, tagf, sc="", tmp=30, vaddr=1):
    for i in range(n):
        if i % 4 == 0: a(f"s_add_u32 s{tmp}, s{sbase}, {rel+i*1024}")
        a.vm(f"buffer_load_dwordx4 {dst(i)}, v{vaddr}, {WS}, s{tmp} offen offset:{(i%4)*1024} {sc}".rstrip(), tagf(i))
def signal_group(a, kind):
    a.vwait_all(); a("s_barrier")
    L = a.lab("SG")
    a(f"""s_cmp_lg_u32 s{sW}, 0
    s_cbranch_scc1 {L}
    s_lshl_b32 s30, s{sL}, 14
    s_lshl_b32 s31, s{sI}, 8
    s_add_u32 s30, s30, s31
    s_add_u32 s30, s30, {O['FLAGS']+kind*4096}
    s_mov_b64 exec, 1
    v_mov_b32 v14, 1
    buffer_atomic_add v14, v4, {WS}, s30 offen sc1
    s_mov_b64 exec, -1
    {L}:""")
def wait_group(a, kind, lsub=0):
    L = a.lab("WG")
    a(f"""s_cmp_lg_u32 s{sW}, 0
    s_cbranch_scc1 {L}_d
    s_sub_u32 s30, s{sL}, {lsub}
    s_lshl_b32 s30, s30, 14
    s_lshl_b32 s31, s{sI}, 8
    s_add_u32 s30, s30, s31
    s_add_u32 s30, s30, {O['FLAGS']+kind*4096}
    s_mov_b32 s32, 0x40000
    {L}_p:
    buffer_load_dword v14, v4, {WS}, s30 offen sc1
    s_sub_u32 s32, s32, 1
    s_cbranch_scc1 {L}_d
    s_waitcnt vmcnt(0)
    v_readfirstlane_b32 s31, v14
    s_cmp_lt_u32 s31, 16
    s_cbranch_scc1 {L}_p
    {L}_d:
    s_barrier""")

def stats_issue(a, xi_sreg):
    a(f"s_mul_i32 s33, s{xi_sreg}, {Y.STSZ}\ns_lshl_b32 s34, s{sI}, 10\ns_add_u32 s33, s33, s34\ns_lshl_b32 s34, s{sW}, 8\ns_add_u32 s33, s33, s34\ns_add_u32 s33, s33, {O['ST']}")
    for q in range(4):
        if q: a(f"s_add_u32 s33, s33, 16384")
        a.vm(f"buffer_load_dwordx2 {vr(224+2*q,2)}, v7, {WS}, s33 offen sc1", "st")
def x_issue(a, xi_sreg):
    a(f"s_mul_i32 s33, s{xi_sreg}, {Y.XFSZ}\ns_lshl_b32 s34, s{sI}, 2\ns_add_u32 s34, s34, s{sW}\ns_mul_i32 s34, s34, 40960\ns_add_u32 s33, s33, s34")
    lin_loads(a, lambda i: ar(4*i), 33, O['XF'], 40, lambda i: f"x{i}", "sc1")
def stats_finish(a, nacc):
    a.vwait("st")
    a("""v_pk_add_f32 v[224:225], v[224:225], v[226:227]
    v_pk_add_f32 v[228:229], v[228:229], v[230:231]
    v_pk_add_f32 v[224:225], v[224:225], v[228:229]
    v_mov_b32 v226, v224
    v_mov_b32 v227, v225
    v_permlane32_swap_b32 v224, v226
    v_permlane32_swap_b32 v225, v227
    v_add_f32 v224, v224, v226
    v_add_f32 v225, v225, v227""")
    a(f"""v_mul_f32 v224, {f32(-1/640)}, v224
    v_mul_f32 v225, {f32(1/640)}, v225
    v_fma_f32 v225, -v224, v224, v225
    v_max_f32 v225, 0, v225
    v_add_f32 v225, {f32(1e-5)}, v225
    v_rsq_f32 v232, v225""")
    for r in range(0, nacc, 2):
        a(f"v_pk_mul_f32 {vr(16+r,2)}, {vr(16+r,2)}, v[224:225] op_sel_hi:[1,0]")
def cs_issue(a, base, ntile, stride):
    a(f"s_mul_i32 s33, s{sC}, {stride}\ns_add_u32 s33, s33, {base}")
    for t in range(ntile):
        for q in range(4):
            a.vm(f"buffer_load_dwordx4 {vr(16+t*16+q*4)}, v6, {WS}, s33 offen offset:{t*128+q*16}", "cs")

def gemm_pass(a, steps, ring0, nring, pre=None, ahead=6):
    n = len(steps)
    def rd(i):
        if pre: pre(i)
        b, o = ldsaddr(steps[i][0])
        a.ds(f"ds_read_b128 {vr(ring0+(i%nring)*4)}, v{b} offset:{o}", f"w{i}")
    for i in range(min(ahead, n)): rd(i)
    for i in range(n):
        _, acc, xi = steps[i]
        a.vwait(f"x{xi}")
        a.lwait(f"w{i}")
        a(f"{M32} {vr(acc,16)}, {vr(ring0+(i%nring)*4)}, {ar(4*xi)}, {vr(acc,16)}")
        if i+ahead < n: rd(i+ahead)

def prefetch_wq(a):
    a(f"s_mul_i32 s33, s{sC}, 163840\ns_lshl_b32 s34, s{sW}, 12\ns_add_u32 s33, s33, s34")
    dma(a, 33, [(O['WQ']+n*16384, n*16384, 4) for n in range(10)], 34, "wq")
    cs_issue(a, O['CSQ'], 4, 512)
def w13_stage(a, s):
    slot = (s+4) % 8
    dma(a, 40, [(s*20480, slot*20480, 4), (s*20480+4096, slot*20480+4096, 1)], 41, f"s{s}")

def phase_qkv(a):
    a(f"s_lshl_b32 s35, s{sL}, 1")
    stats_issue(a, 35); x_issue(a, 35)
    stats_finish(a, 64)
    a("s_barrier")
    stamp(a, 1)
    steps = [((ks*3+t)*1024, 16+16*t, ks) for ks in range(40) for t in range(3)]+[((120+ks)*1024, 64, ks) for ks in range(40)]
    gemm_pass(a, steps, 80, 12)
    a("s_barrier")
    stamp(a, 2)
    a(f"s_mul_i32 s33, s{sJ}, 102400\ns_mul_i32 s34, s{sW}, 25600\ns_add_u32 s33, s33, s34")
    lin_loads(a, lambda i: ar(156+4*i), 33, O['WOF'], 25, lambda i: "wo")
    a(f"v_mul_f32 v233, {f32(LOG2E*20**-0.5)}, v232")
    def sc(r0, n, q):
        for r in range(r0, r0+n, 2):
            a(f"v_pk_mul_f32 {vr(r,2)}, {vr(r,2)}, v[232:233] " + ("op_sel:[0,1] op_sel_hi:[1,1]" if q else "op_sel_hi:[1,0]"))
    def pk(d, r0, n):
        for i in range(n): a(f"v_cvt_pk_bf16_f32 v{d+i}, v{r0+2*i}, v{r0+2*i+1}")
    sc(16, 40, 0); pk(80, 16, 8); pk(88, 48, 2); pk(92, 32, 8); pk(90, 52, 2)
    a(f"""s_add_u32 s33, s{sW}, 8
    s_mul_i32 s33, s33, {Y.KVB}
    v_add_u32 v128, s33, v1
    v_lshrrev_b32 v129, 1, v1
    v_add_u32 v130, s33, v129
    v_and_b32 v131, 31, v5
    v_mul_u32_u24 v131, 48, v131
    v_add_u32 v131, s33, v131
    v_lshrrev_b32 v132, 3, v6
    v_add_u32 v132, v131, v132
    v_mul_u32_u24 v133, 24, v6
    v_add_u32 v133, v131, v133
    v_mov_b32 v134, 0x3f80
    v_mov_b32 v135, 0""")
    a.ds("ds_write_b128 v128, v[80:83]"); a.ds("ds_write_b128 v128, v[84:87] offset:1024"); a.ds("ds_write_b64 v130, v[88:89] offset:2048")
    for hd in range(2):
        a.ds(f"ds_write_b64 v132, {vr(92+4*hd,2)} offset:{2560+hd*1536}")
        a.ds(f"ds_write_b64 v132, {vr(94+4*hd,2)} offset:{2560+hd*1536+16}")
    a.ds(f"ds_write_b64 v133, v[90:91] offset:{2560+32}")
    a.ds(f"ds_write_b64 v133, v[134:135] offset:{2560+40}")
    a(f"""s_mul_i32 s36, s{sL}, {Y.KVXSZ}
    s_lshl_b32 s34, s{sC}, 6
    s_lshl_b32 s37, s{sI}, 2
    s_add_u32 s34, s34, s37
    s_mul_i32 s34, s34, {Y.KVB}
    s_add_u32 s36, s36, s34
    s_add_u32 s36, s36, {O['KVX']}
    s_mul_i32 s34, s{sW}, {Y.KVB}
    s_add_u32 s34, s34, s36
    s_add_u32 s37, s34, 2560""")
    a.vm(f"buffer_store_dwordx4 v[80:83], v1, {WS}, s34 offen sc1")
    a.vm(f"buffer_store_dwordx4 v[84:87], v1, {WS}, s34 offen offset:1024 sc1")
    a.vm(f"buffer_store_dwordx2 v[88:89], v129, {WS}, s34 offen offset:2048 sc1")
    a.lwait_all()
    for q in range(3): a.ds(f"ds_read_b128 {vr(136+4*q)}, v128 offset:{2560+q*1024}", f"vb{q}")
    sc(56, 20, 1); pk(100, 56, 4); pk(104, 64, 4); pk(108, 72, 2)
    for q in range(3):
        a.lwait(f"vb{q}")
        a.vm(f"buffer_store_dwordx4 {vr(136+4*q)}, v1, {WS}, s37 offen offset:{q*1024} sc1")
    a("v_cmp_gt_u32 vcc, 32, v5\nv_cndmask_b32 v110, 0, v108, vcc\nv_cndmask_b32 v111, 0, v109, vcc\nv_cndmask_b32 v112, v108, v4, vcc\nv_cndmask_b32 v113, v109, v4, vcc")
    a(f"v_and_b32 v128, 31, v5\nv_lshrrev_b32 v129, 4, v6\nv_sub_u32 v128, v128, v129\nv_mov_b32 v129, {f32(-1e30)}")
    for r in range(16):
        a(f"v_cmp_le_i32 vcc, {8*(r>>2)+(r&3)}, v128\nv_cndmask_b32 v{196+r}, v129, v4, vcc\nv_cndmask_b32 v{180+r}, v4, v129, vcc")
    a.vwait_all(); a("s_barrier")
    L = a.lab("KV")
    a(f"""s_lshl_b32 s30, s{sL}, 4
    s_add_u32 s30, s30, s{sI}
    s_lshl_b32 s30, s30, 4
    s_add_u32 s30, s30, s{sC}
    s_lshl_b32 s30, s30, 7
    s_add_u32 s30, s30, {O['FLAGS']+32768}
    s_cmp_lg_u32 s{sW}, 0
    s_cbranch_scc1 {L}_d
    s_mov_b64 exec, 1
    v_mov_b32 v14, 1
    buffer_store_dword v14, v4, {WS}, s30 offen sc1
    s_cmp_eq_u32 s{sI}, 0
    s_cbranch_scc1 {L}_e
    s_sub_u32 s30, s30, 2048
    s_cmp_eq_u32 s{sI}, 1
    s_cselect_b32 s31, 0, 2048
    s_sub_u32 s31, s30, s31
    s_mov_b32 s32, 0x40000
    {L}_p:
    buffer_load_dword v14, v4, {WS}, s30 offen sc1
    buffer_load_dword v15, v4, {WS}, s31 offen sc1
    s_sub_u32 s32, s32, 1
    s_cbranch_scc1 {L}_e
    s_waitcnt vmcnt(0)
    v_and_b32 v14, v14, v15
    s_nop 0
    v_readfirstlane_b32 s33, v14
    s_cmp_eq_u32 s33, 0
    s_cbranch_scc1 {L}_p
    {L}_e:
    s_mov_b64 exec, -1
    {L}_d:
    s_barrier""")
    stamp(a, 3)
    a(f"""s_lshr_b32 s33, s{sW}, 1
    s_add_u32 s33, s33, s{sI}
    s_cmp_lt_u32 s33, 2
    s_cbranch_scc1 {L}_nh
    s_mul_i32 s34, s{sW}, 11264
    s_add_u32 s33, s36, s34
    s_sub_u32 s33, s33, 45056""")
    dma(a, 33, [(0, 0, 4), (4096, 4096, 4), (8192, 8192, 3)], 34, "halo", "sc1")
    a(f"{L}_nh:")
    a.vwait_all(); a("s_barrier")
    a(f"""s_cmp_ge_u32 s{sI}, 2
    s_cbranch_scc1 {L}_nf
    s_lshl_b32 s33, s{sI}, 2
    s_sub_u32 s33, 8, s33
    s_mul_i32 s34, s33, {Y.KVB}
    v_lshlrev_b32 v128, 3, v6
    v_add_u32 v128, s34, v128
    v_lshlrev_b32 v129, 2, v6
    v_add_u32 v129, s34, v129
    ds_read_b128 v[16:19], v128
    ds_read_b128 v[20:23], v128 offset:1024
    ds_read_b64 v[24:25], v129 offset:2048
    v_mov_b32 v28, 0
    v_mov_b32 v29, 0
    v_mov_b32 v30, 0
    v_mov_b32 v31, 0
    s_mov_b32 s35, s{sW}
    s_waitcnt lgkmcnt(0)
    {L}_fl:
    s_mul_i32 s34, s35, {Y.KVB}
    v_add_u32 v128, s34, v1
    v_lshrrev_b32 v129, 1, v1
    v_add_u32 v129, s34, v129
    ds_write_b128 v128, v[16:19]
    ds_write_b128 v128, v[20:23] offset:1024
    ds_write_b64 v129, v[24:25] offset:2048
    ds_write_b128 v128, v[28:31] offset:2560
    ds_write_b128 v128, v[28:31] offset:3584
    ds_write_b128 v128, v[28:31] offset:4608
    s_add_u32 s35, s35, 4
    s_cmp_lt_u32 s35, s33
    s_cbranch_scc1 {L}_fl
    s_waitcnt lgkmcnt(0)
    s_barrier
    {L}_nf:""")

def phase_attn(a):
    a(f"s_mul_i32 s40, s{sC}, 286720\ns_mul_i32 s41, s{sW}, 5120\ns_add_u32 s40, s40, s41\ns_add_u32 s40, s40, {O['W13F']}")
    for s in range(4): w13_stage(a, s)
    stamp(a, 4)
    a(f"""s_mul_i32 s33, s{sW}, {Y.KVB}
    v_add_u32 v128, s33, v1
    v_lshrrev_b32 v129, 1, v1
    v_add_u32 v129, s33, v129
    v_bfe_u32 v130, v5, 2, 2
    v_lshrrev_b32 v131, 4, v6
    v_add_u32 v130, v130, v131
    v_mul_u32_u24 v130, 48, v130
    v_and_b32 v131, 3, v5
    v_lshlrev_b32 v132, 3, v131
    v_min_u32 v131, 1, v131
    v_lshlrev_b32 v131, 3, v131
    v_add_u32 v131, 32, v131
    v_and_b32 v133, 16, v5
    v_cmp_eq_u32 vcc, 0, v133
    v_cndmask_b32 v131, v131, v132, vcc
    v_add3_u32 v130, v130, v131, s33""")
    a(f"""s_mul_i32 s34, s{sL}, {Y.OFSZ}
    s_lshl_b32 s35, s{sI}, 3
    s_lshl_b32 s33, s{sW}, 1
    s_add_u32 s35, s35, s33
    s_mul_i32 s35, s35, 20480
    s_add_u32 s34, s34, s35
    s_mul_i32 s35, s{sC}, 1280
    s_add_u32 s34, s34, s35
    s_add_u32 s34, s34, {O['OF']}""")
    KB = Y.KVB
    for b in range(9): a.ds(f"ds_read_b64 {ar(36+2*b,2)}, v129 offset:{b*KB+2048}", f"k2_{b}")
    for hd in range(2):
        Q1 = vr(100+4*hd); Q2 = vr(110+2*hd, 2)
        for b in range(9): a.ds(f"ds_read_b128 {ar(4*b)}, v128 offset:{b*KB+hd*1024}", f"k1_{b}")
        def qk(b, cin):
            S = vr(16+16*(b % 3), 16)
            a(f"{M32} {S}, {ar(4*b)}, {Q1}, {cin}")
            a(f"{M8} {S}, {ar(36+2*b,2)}, {Q2}, {S}")
        def vread(b):
            for s in range(2):
                for p in range(2):
                    a.ds(f"ds_read_b64_tr_b16 {ar(56+8*b+4*s+2*p,2)}, v130 offset:{b*KB+2560+hd*1536+(16*s+8*p)*48}", f"v{b}")
        for b in range(11):
            if b < 9:
                a.lwait(f"k1_{b}")
                qk(b, "v[180:195]" if b == 0 else ("v[196:211]" if b == 8 else "0"))
                vread(b)
            if b >= 2:
                S = 16+16*((b-2) % 3)
                for r in range(0, 16, 2):
                    if b == 2 and r == 0: a(f"v_max_f32 v114, v{S}, v{S+1}")
                    else: a(f"v_max3_f32 v114, v{S+r}, v{S+r+1}, v114")
        a("v_mov_b32 v115, v114\nv_permlane32_swap_b32 v114, v115\nv_max_f32 v114, v114, v115")
        for r in range(16): a(f"v_sub_f32 v{212+r}, v{180+r}, v114")
        qk(0, "v[212:227]")
        for r in range(16): a(f"v_sub_f32 v{164+r}, 0, v114")
        qk(1, "v[164:179]")
        for b in range(9):
            S = 16+16*(b % 3); P = 80+8*(b % 2)
            if b == 5:
                for r in range(16): a(f"v_sub_f32 v{212+r}, v{196+r}, v114")
            for r in range(16): a(f"v_exp_f32 v{S+r}, v{S+r}")
            if b+2 < 9: qk(b+2, "v[212:227]" if b+2 == 8 else "v[164:179]")
            for i in range(8): a(f"v_cvt_pk_bf16_f32 v{P+i}, v{S+2*i}, v{S+2*i+1}")
            a.lwait(f"v{b}")
            a(f"{M32} v[64:79], {ar(56+8*b)}, {vr(P)}, {'0' if b == 0 else 'v[64:79]'}")
            a(f"{M32} v[64:79], {ar(60+8*b)}, {vr(P+4)}, v[64:79]")
        a("v_cmp_gt_u32 vcc, 32, v5\nv_cndmask_b32 v116, v72, v76, vcc\nv_rcp_f32 v116, v116")
        for r in range(0, 12, 2): a(f"v_pk_mul_f32 {vr(64+r,2)}, {vr(64+r,2)}, v[116:117] op_sel_hi:[1,0]")
        for i in range(4): a(f"v_cvt_pk_bf16_f32 v{120+i}, v{64+2*i}, v{65+2*i}")
        for i in range(2): a(f"v_cvt_pk_bf16_f32 v{124+2*hd+i}, v{72+2*i}, v{73+2*i}")
        a.vm(f"buffer_store_dwordx4 v[120:123], v8, {WS}, s34 offen offset:{hd*512} sc1")
    a("s_mov_b32 exec_hi, 0")
    a.vm(f"buffer_store_dwordx4 v[124:127], v8, {WS}, s34 offen offset:1024 sc1")
    a("s_mov_b64 exec, -1")
    stamp(a, 5)
    signal_group(a, 0)

def n_epilogue(a, xadd, last_branch):
    a("s_nop 7")
    for tt in range(4):
        L = a.lab("RW")
        a(f"s_cmp_eq_u32 s{sW}, {tt}\ns_cbranch_scc1 {L}\ns_sub_u32 s33, s{sW}, {tt+1}\ns_and_b32 s33, s33, 3\ns_mul_i32 s33, s33, 5120\nv_add_u32 v128, s33, v1")
        for nt in range(5): a(f"ds_write_b128 v128, {vr(16+tt*20+nt*4)} offset:{tt*15360+nt*1024}")
        a(f"s_branch {L}x\n{L}:")
        for r in range(0, 20, 2): a(f"v_pk_add_f32 {vr(RES+r,2)}, {vr(RES+r,2)}, {vr(16+tt*20+r,2)}")
        a(f"{L}x:")
    a(f"s_mul_i32 s33, s{sW}, 15360\nv_add_u32 v128, s33, v1")
    a.lwait_all(); a("s_barrier")
    for q in range(15): a.ds(f"ds_read_b128 {vr(16+4*q)}, v128 offset:{q*1024}", f"r{q//5}")
    a(f"""s_lshl_b32 s35, s{sL}, 1
    s_add_u32 s35, s35, {xadd}
    s_lshl_b32 s36, s{sI}, 3
    s_lshl_b32 s37, s{sTH}, 2
    s_add_u32 s36, s36, s37
    s_add_u32 s36, s36, s{sW}""")
    for s in range(3):
        a.lwait(f"r{s}")
        for r in range(0, 20, 2): a(f"v_pk_add_f32 {vr(RES+r,2)}, {vr(RES+r,2)}, {vr(16+s*20+r,2)}")
    for i in range(10): a(f"v_cvt_pk_bf16_f32 v{80+i}, v{RES+2*i}, v{RES+2*i+1}")
    if last_branch:
        a(f"s_cmp_eq_u32 s{sL}, 1\ns_cbranch_scc1 L_final")
    a(f"""s_mul_i32 s33, s35, {Y.XFSZ}
    s_lshr_b32 s37, s36, 1
    s_mul_i32 s37, s37, 40960
    s_add_u32 s33, s33, s37
    s_and_b32 s37, s36, 1
    s_lshl_b32 s37, s37, 8
    s_add_u32 s33, s33, s37
    s_mul_i32 s37, s{sJ}, 5120
    s_add_u32 s33, s33, s37
    s_add_u32 s33, s33, {O['XF']}
    s_add_u32 s34, s33, 4096""")
    a.vm(f"buffer_store_dwordx4 v[80:83], v10, {WS}, s33 offen sc1")
    a.vm(f"buffer_store_dwordx4 v[84:87], v10, {WS}, s33 offen offset:2048 sc1")
    a.vm(f"buffer_store_dwordx2 v[88:89], v11, {WS}, s34 offen sc1")
    a(f"v_pk_mul_f32 v[94:95], {vr(RES,2)}, {vr(RES,2)}\nv_pk_add_f32 v[92:93], {vr(RES,2)}, {vr(RES+2,2)}")
    for r in range(2, 20, 2):
        a(f"v_pk_fma_f32 v[94:95], {vr(RES+r,2)}, {vr(RES+r,2)}, v[94:95]")
        if r > 2: a(f"v_pk_add_f32 v[92:93], v[92:93], {vr(RES+r,2)}")
    a("v_add_f32 v92, v92, v93\nv_add_f32 v93, v94, v95")
    for op in ("v_permlane32_swap_b32", "v_permlane16_swap_b32"):
        a(f"v_mov_b32 v94, v92\nv_mov_b32 v95, v93\n{op} v92, v94\n{op} v93, v95\nv_pk_add_f32 v[92:93], v[92:93], v[94:95]")
    a(f"""s_mul_i32 s33, s35, {Y.STSZ}
    s_lshl_b32 s37, s{sJ}, 14
    s_add_u32 s33, s33, s37
    s_lshl_b32 s37, s36, 7
    s_add_u32 s33, s33, s37
    s_add_u32 s33, s33, {O['ST']}
    v_lshrrev_b32 v94, 1, v1
    s_mov_b64 exec, 0xffff""")
    a.vm(f"buffer_store_dwordx2 v[92:93], v94, {WS}, s33 offen sc1")
    a("s_mov_b64 exec, -1")

def phase_wo(a):
    wait_group(a, 0)
    stamp(a, 6)
    a(f"""s_mul_i32 s33, s{sL}, {Y.OFSZ}
    s_lshl_b32 s35, s{sI}, 3
    s_lshl_b32 s34, s{sTH}, 2
    s_add_u32 s35, s35, s34
    s_mul_i32 s35, s35, 20480
    s_add_u32 s33, s33, s35
    s_mul_i32 s35, s{sW}, 5120
    s_add_u32 s33, s33, s35""")
    for tt in range(4): a(f"s_add_u32 s{44+tt}, s33, {O['OF']+tt*20480}\ns_add_u32 s{48+tt}, s{44+tt}, 4096")
    for ks in range(5):
        for tt in range(4):
            a.vm(f"buffer_load_dwordx4 {ar(ks*16+tt*4)}, v1, {WS}, s{(44 if ks<4 else 48)+tt} offen offset:{(ks%4)*1024} sc1", f"o{ks}_{tt}")
    for ks in range(5):
        for tt in range(4):
            a.vwait(f"o{ks}_{tt}")
            for nt in range(5):
                acc = vr(16+tt*20+nt*4)
                a(f"{M16} {acc}, {ar(156+ks*20+nt*4)}, {ar(ks*16+tt*4)}, {'0' if ks==0 else acc}")
    stamp(a, 7)
    n_epilogue(a, 1, False)
    stamp(a, 8)
    signal_group(a, 1)

def phase_ffn1(a):
    for s in range(4, 8): w13_stage(a, s)
    cs_issue(a, O['CS13'], 7, 896)
    wait_group(a, 1)
    stamp(a, 9)
    a(f"s_lshl_b32 s35, s{sL}, 1\ns_add_u32 s35, s35, 1")
    stats_issue(a, 35); x_issue(a, 35)
    stats_finish(a, 112)
    a(f"""s_mul_i32 s42, s{sL}, {Y.HFSZ}
    s_lshl_b32 s35, s{sI}, 3
    s_lshl_b32 s33, s{sW}, 1
    s_add_u32 s35, s35, s33
    s_mul_i32 s35, s35, 55296
    s_add_u32 s42, s42, s35
    s_mul_i32 s35, s{sC}, 3584
    s_mul_i32 s33, s{sC}, 3072
    s_add_u32 s33, s33, 6144
    s_min_u32 s35, s35, s33
    s_add_u32 s42, s42, s35
    s_add_u32 s42, s42, {O['HF']}
    v_mul_f32 v233, {f32(-LOG2E)}, v232
    v_mul_f32 v232, v232, v232""")
    steps = []
    for lts in ((0, 1, 2), (3, 4), (5,), (6,)):
        for ks in range(40):
            for lt in lts:
                q = Y.w13_seq(lt, ks)
                steps.append(((((q//20)+4) % 8)*20480+(q % 20)*1024, 16+16*lt, ks))
    def pre(i):
        if i % 20 == 0:
            s = i//20
            a.vwait(f"s{s}"); a("s_barrier")
            if s >= 2 and s+6 < 14: w13_stage(a, s+6)
    gemm_pass(a, steps, 128, 12, pre)
    stamp(a, 10)
    for lt in range(7):
        g = 16+16*lt; u = g+8; t = 176
        for r in range(0, 8, 2):
            a(f"v_pk_mul_f32 {vr(t+r,2)}, {vr(g+r,2)}, v[232:233] op_sel:[0,1] op_sel_hi:[1,1]")
            a(f"v_pk_mul_f32 {vr(g+r,2)}, {vr(g+r,2)}, {vr(u+r,2)}")
        for r in range(8): a(f"v_exp_f32 v{t+r}, v{t+r}")
        for r in range(0, 8, 2):
            a(f"v_pk_mul_f32 {vr(g+r,2)}, {vr(g+r,2)}, v[232:233] op_sel_hi:[1,0]")
            a(f"v_pk_add_f32 {vr(t+r,2)}, {vr(t+r,2)}, 1.0 op_sel_hi:[1,0]")
        for r in range(8): a(f"v_rcp_f32 v{t+r}, v{t+r}")
        for r in range(0, 8, 2): a(f"v_pk_mul_f32 {vr(g+r,2)}, {vr(g+r,2)}, {vr(t+r,2)}")
        for i in range(4): a(f"v_cvt_pk_bf16_f32 v{u+i}, v{g+2*i}, v{g+2*i+1}")
        if lt == 6: a(f"s_cmp_ge_u32 s{sC}, 12\ns_cselect_b32 s42, 0x7fff0000, s42")
        a.vm(f"buffer_store_dwordx4 {vr(u)}, v9, {WS}, s42 offen offset:{lt*512} sc1")
    stamp(a, 11)
    signal_group(a, 2)

def phase_ffn2(a):
    a(f"""s_mul_i32 s43, s{sW}, 14
    s_cmp_eq_u32 s{sW}, 3
    s_cselect_b32 s43, 41, s43
    s_mul_i32 s33, s{sJ}, 54
    s_add_u32 s33, s33, s43
    s_mul_i32 s52, s33, 5120
    s_add_u32 s52, s52, {O['W2F']}
    s_cmp_ge_u32 s{sW}, 2
    s_cselect_b32 s53, 0x40000000, 0""")
    NWS, NHS = 8, 6
    def wld(ks):
        a(f"s_add_u32 s30, s52, {ks*5120}")
        if ks == 13: a("s_add_u32 s30, s30, s53")
        a("s_add_u32 s31, s30, 4096")
        for nt in range(5):
            a.vm(f"buffer_load_dwordx4 {ar((ks%NWS)*20+nt*4)}, v1, {WS}, s{30+nt//4} offen offset:{(nt%4)*1024}", f"W{ks}")
    def hld(ks):
        if ks % 4 == 0 and ks:
            for tt in range(4): a(f"s_add_u32 s{44+tt}, s{44+tt}, 4096")
        if ks == 13:
            for tt in range(4): a(f"s_add_u32 s{44+tt}, s{44+tt}, s53")
        for tt in range(4):
            a.vm(f"buffer_load_dwordx4 {ar(160+(ks%NHS)*16+tt*4)}, v1, {WS}, s{44+tt} offen offset:{(ks%4)*1024} sc1", f"h{ks}_{tt}")
    for ks in range(NWS): wld(ks)
    wait_group(a, 2)
    stamp(a, 12)
    a(f"""s_mul_i32 s33, s{sL}, {Y.HFSZ}
    s_lshl_b32 s35, s{sI}, 3
    s_lshl_b32 s34, s{sTH}, 2
    s_add_u32 s35, s35, s34
    s_mul_i32 s35, s35, 55296
    s_add_u32 s33, s33, s35
    s_lshl_b32 s35, s43, 10
    s_add_u32 s33, s33, s35""")
    for tt in range(4): a(f"s_add_u32 s{44+tt}, s33, {O['HF']+tt*55296}")
    for ks in range(NHS): hld(ks)
    for ks in range(14):
        a.vwait(f"W{ks}")
        for tt in range(4):
            a.vwait(f"h{ks}_{tt}")
            for nt in range(5):
                acc = vr(16+tt*20+nt*4)
                a(f"{M16} {acc}, {ar((ks%NWS)*20+nt*4)}, {ar(160+(ks%NHS)*16+tt*4)}, {'0' if ks==0 else acc}")
        if ks+NHS < 14: hld(ks+NHS)
        if ks+NWS < 14: wld(ks+NWS)
    stamp(a, 13)
    n_epilogue(a, 2, True)
    stamp(a, 14)
    signal_group(a, 3)

def gen_main(a, name):
    a(f".globl {name}\n.p2align 8\n.type {name},@function\n{name}:")
    a("s_cmp_ge_u32 s2, 256\ns_cbranch_scc1 L_end")
    a("s_load_dwordx2 s[4:5], s[0:1], 72\ns_load_dwordx2 s[6:7], s[0:1], 56")
    a(f"v_lshrrev_b32 v1, 6, v0\nv_and_b32 v5, 63, v0\nv_readfirstlane_b32 s{sW}, v1")
    if CFG["map"] == "pair":
        a(f"s_bfe_u32 s30, s2, 0x20001\ns_lshl_b32 s30, s30, 2\ns_lshr_b32 s31, s2, 6\ns_add_u32 s{sI}, s30, s31\ns_and_b32 s30, s2, 1\ns_lshl_b32 s30, s30, 3\ns_bfe_u32 s31, s2, 0x30003\ns_add_u32 s{sC}, s30, s31")
    else:
        a(f"s_and_b32 s30, s2, 7\ns_lshl_b32 s30, s30, 1\ns_lshr_b32 s31, s2, 7\ns_add_u32 s{sI}, s30, s31\ns_bfe_u32 s{sC}, s2, 0x40003")
    a(f"s_lshr_b32 s30, s{sC}, 3\ns_lshl_b32 s30, s30, 2\ns_and_b32 s31, s{sC}, 3\ns_add_u32 s{sJ}, s30, s31\ns_bfe_u32 s{sTH}, s{sC}, 0x10002\ns_mov_b32 s{sL}, 0")
    a("""v_lshlrev_b32 v1, 4, v5
    v_add_u32 v2, 0x10000, v1
    v_add_u32 v3, 0x20000, v1
    v_mov_b32 v4, 0
    v_and_b32 v6, 32, v5
    v_lshlrev_b32 v6, 1, v6
    v_and_b32 v7, 31, v5
    v_lshlrev_b32 v7, 3, v7
    v_lshl_add_u32 v7, v6, 10, v7
    v_and_b32 v14, 15, v5
    v_bfe_u32 v15, v5, 4, 1
    v_lshlrev_b32 v8, 2, v6
    v_lshl_add_u32 v8, v14, 4, v8
    v_mul_u32_u24 v9, 55296, v15
    v_add_u32 v9, v9, v8
    v_mul_u32_u24 v15, 20480, v15
    v_add_u32 v8, v8, v15
    v_lshrrev_b32 v15, 4, v5
    v_lshlrev_b32 v10, 9, v15
    v_lshl_add_u32 v10, v14, 4, v10
    v_lshlrev_b32 v11, 3, v6
    v_lshl_add_u32 v11, v14, 4, v11
    v_and_b32 v12, 16, v5
    v_lshrrev_b32 v12, 1, v12
    v_add_u32 v11, v11, v12
    v_mul_u32_u24 v13, 1280, v14
    v_lshl_add_u32 v12, v15, 4, v13
    v_lshl_add_u32 v13, v15, 3, v13
    s_waitcnt lgkmcnt(0)""")
    a(f"s_mov_b32 s8, s4\ns_mov_b32 s9, s5\ns_mov_b32 s10, {Y.WS_USED}\ns_mov_b32 s11, 0x20000\ns_mov_b32 s12, s6\ns_mov_b32 s13, s7\ns_mov_b32 s14, {2048*1280}\ns_mov_b32 s15, 0x20000")
    stamp(a, 0)
    a(f"""s_lshl_b32 s36, s{sI}, 3
    s_lshl_b32 s37, s{sTH}, 2
    s_add_u32 s36, s36, s37
    s_add_u32 s36, s36, s{sW}
    s_lshr_b32 s33, s36, 1
    s_mul_i32 s33, s33, 40960
    s_and_b32 s37, s36, 1
    s_lshl_b32 s37, s37, 8
    s_add_u32 s33, s33, s37
    s_mul_i32 s37, s{sJ}, 5120
    s_add_u32 s33, s33, s37
    s_add_u32 s33, s33, {O['XF']}
    s_add_u32 s34, s33, 4096""")
    a.vm(f"buffer_load_dwordx4 v[80:83], v10, {WS}, s33 offen", "r")
    a.vm(f"buffer_load_dwordx4 v[84:87], v10, {WS}, s33 offen offset:2048", "r")
    a.vm(f"buffer_load_dwordx2 v[88:89], v11, {WS}, s34 offen", "r")
    prefetch_wq(a)
    a.vwait("r")
    for i in range(10): a(f"v_lshlrev_b32 v{RES+2*i}, 16, v{80+i}\nv_and_b32 v{RES+2*i+1}, 0xffff0000, v{80+i}")
    a("L_layer:")
    phase_qkv(a); phase_attn(a); phase_wo(a); phase_ffn1(a); phase_ffn2(a)
    prefetch_wq(a)
    a(f"s_mov_b32 s{sL}, 1")
    wait_group(a, 3, 1)
    stamp(a, 0)
    a("s_branch L_layer")
    a(f"""L_final:
    s_lshl_b32 s33, s36, 4
    s_mul_i32 s33, s33, 1280
    s_mul_i32 s37, s{sJ}, 160
    s_add_u32 s33, s33, s37
    buffer_store_dwordx4 v[80:83], v12, {OUT}, s33 offen
    buffer_store_dwordx4 v[84:87], v12, {OUT}, s33 offen offset:64
    buffer_store_dwordx2 v[88:89], v13, {OUT}, s33 offen offset:128""")
    stamp(a, 15)
    a("L_end:\ns_endpgm")
```

```python
from asmlib import *
import layout as Y
assert all((r*205)>>10 == r//5 for r in range(160))
assert all((r*37)>>8 == r//7 for r in range(84)) and all((r*43)>>8 == r//6 for r in range(24))
assert all((r*205)>>14 == r//80 for r in range(320)) and all((r*205)>>11 == r//10 for r in range(80))
PREP_WGS = 186
def srd(a, d, lo, nbytes):
    a(f"s_mov_b32 s{d}, s{lo}\ns_mov_b32 s{d+1}, s{lo+1}\ns_mov_b32 s{d+2}, {nbytes}\ns_mov_b32 s{d+3}, 0x20000")

def map_qkv(a, q, ob, oks, ocs, t):
    hd, dc, hb, tl, m, x = range(t, t+6)
    a(f"""v_mul_u32_u24 v{hd}, 205, v{q}
    v_lshrrev_b32 v{hd}, 10, v{hd}
    v_mul_u32_u24 v{dc}, 5, v{hd}
    v_sub_u32 v{dc}, v{q}, v{dc}
    v_and_b32 v{hb}, 1, v{hd}
    v_lshrrev_b32 v{hd}, 1, v{hd}
    v_mul_lo_u32 v{tl}, v{hb}, s41
    v_add_u32 v{tl}, s40, v{tl}
    v_mul_lo_u32 v{m}, v{hb}, s43
    v_add_u32 v{m}, s42, v{m}
    v_lshl_add_u32 v{m}, v{dc}, 2, v{m}
    v_lshlrev_b32 v{x}, 2, v{hb}
    v_add_u32 v{x}, s45, v{x}
    v_cmp_eq_u32 vcc, 4, v{dc}
    v_mov_b32 v{dc}, s44
    s_nop 0
    v_cndmask_b32 v{m}, v{m}, v{x}, vcc
    v_cndmask_b32 v{tl}, v{tl}, v{dc}, vcc
    v_lshl_add_u32 v{ocs}, v{hd}, 2, v{tl}
    v_cmp_eq_u32 vcc, 3, v{tl}
    v_mov_b32 v{x}, 120
    v_mov_b32 v{oks}, 3072
    v_mov_b32 v{dc}, 1024
    v_cndmask_b32 v{tl}, v{tl}, v{x}, vcc
    v_cndmask_b32 v{oks}, v{oks}, v{dc}, vcc
    v_mul_u32_u24 v{ob}, 160, v{hd}
    v_add_u32 v{ob}, v{ob}, v{tl}""")
    fin(a, ob, ocs, m, x, Y.off["WQ"], Y.off["CSQ"])
def fin(a, ob, ocs, m, x, wbase, csbase):
    a(f"""v_lshlrev_b32 v{ob}, 10, v{ob}
    v_lshl_add_u32 v{ob}, v{m}, 4, v{ob}
    v_add_u32 v{ob}, {wbase}, v{ob}
    v_bfe_u32 v{x}, v{m}, 2, 1
    v_lshl_add_u32 v{ocs}, v{ocs}, 1, v{x}
    v_lshrrev_b32 v{x}, 3, v{m}
    v_lshlrev_b32 v{x}, 4, v{x}
    v_lshl_add_u32 v{ocs}, v{ocs}, 6, v{x}
    v_add_u32 v{ocs}, {csbase}, v{ocs}""")
def map_w13(a, q, ob, oks, ocs, t):
    ft, c, lt, m, x, y = range(t, t+6)
    a(f"""v_lshrrev_b32 v{ft}, 2, v{q}
    v_and_b32 v{m}, 1, v{q}
    v_lshlrev_b32 v{m}, 3, v{m}
    v_and_b32 v{x}, 2, v{q}
    v_lshl_add_u32 v{m}, v{x}, 1, v{m}
    v_add_u32 v{m}, s40, v{m}
    v_mul_u32_u24 v{c}, 37, v{ft}
    v_lshrrev_b32 v{c}, 8, v{c}
    v_mul_u32_u24 v{lt}, 7, v{c}
    v_sub_u32 v{lt}, v{ft}, v{lt}
    v_subrev_u32 v{x}, 84, v{ft}
    v_cmp_le_u32 vcc, 84, v{ft}
    v_and_b32 v{x}, 31, v{x}
    v_mul_u32_u24 v{y}, 43, v{x}
    v_lshrrev_b32 v{y}, 8, v{y}
    v_mul_u32_u24 v{ft}, 6, v{y}
    v_sub_u32 v{x}, v{x}, v{ft}
    v_add_u32 v{y}, 12, v{y}
    v_cndmask_b32 v{c}, v{c}, v{y}, vcc
    v_cndmask_b32 v{lt}, v{lt}, v{x}, vcc
    v_mul_u32_u24 v{ocs}, 7, v{c}
    v_add_u32 v{ocs}, v{ocs}, v{lt}
    v_mov_b32 v{oks}, 3072
    v_mov_b32 v{ob}, v{lt}
    v_cmp_le_u32 vcc, 3, v{lt}
    v_add_u32 v{x}, 117, v{lt}
    v_mov_b32 v{y}, 2048
    v_cndmask_b32 v{ob}, v{ob}, v{x}, vcc
    v_cndmask_b32 v{oks}, v{oks}, v{y}, vcc
    v_cmp_le_u32 vcc, 5, v{lt}
    v_mul_u32_u24 v{x}, 40, v{lt}
    v_mov_b32 v{y}, 1024
    v_cndmask_b32 v{ob}, v{ob}, v{x}, vcc
    v_cndmask_b32 v{oks}, v{oks}, v{y}, vcc
    v_mul_u32_u24 v{x}, 280, v{c}
    v_add_u32 v{ob}, v{ob}, v{x}""")
    fin(a, ob, ocs, m, x, Y.off["W13F"], Y.off["CS13"])

def gen_prep(a, name):
    a(f".globl {name}\n.p2align 8\n.type {name},@function\n{name}:")
    a(f"s_cmp_ge_u32 s2, {PREP_WGS}\ns_cbranch_scc1 P_end")
    a("s_load_dwordx16 s[48:63], s[0:1], 0\ns_load_dwordx2 s[64:65], s[0:1], 72")
    a("s_mov_b32 s30, 0x05040100\ns_mov_b32 s31, 0x07060302\ns_mov_b32 s32, 0x3f803f80")
    a("s_waitcnt lgkmcnt(0)")
    srd(a, 8, 64, Y.WS_USED)
    a("s_cmp_ge_u32 s2, 121\ns_cbranch_scc1 P_x")
    a("s_cmp_ge_u32 s2, 84\ns_cbranch_scc1 P_n")
    a("v_lshrrev_b32 v1, 3, v0\nv_and_b32 v2, 7, v0")
    a("s_cmp_ge_u32 s2, 30\ns_cbranch_scc1 P_w13")
    srd(a, 12, 50, 640*1920*2)
    a("s_mov_b32 s20, 3840\ns_mov_b32 s33, s2")
    a("s_mul_i32 s34, s2, 205\ns_lshr_b32 s34, s34, 11\ns_mul_i32 s35, s34, 10\ns_sub_u32 s35, s2, s35\ns_lshl_b32 s35, s35, 4")
    a("""s_cmp_eq_u32 s34, 0
    s_cselect_b32 s41, 1, 0
    s_cselect_b32 s42, 16, 0
    s_cselect_b32 s43, -16, 16
    s_cselect_b32 s44, 3, 2
    s_cselect_b32 s40, 2, 0
    s_cselect_b32 s45, 16, 0
    s_cmp_eq_u32 s34, 2
    s_cselect_b32 s40, 1, s40
    s_cselect_b32 s45, 8, s45""")
    a("v_lshl_add_u32 v3, v2, 1, s35\nv_add_u32 v4, 1, v3\nv_and_b32 v5, 15, v0\nv_add_u32 v5, s35, v5")
    map_qkv(a, 3, 10, 11, 12, 20); map_qkv(a, 4, 13, 14, 12, 20); map_qkv(a, 5, 16, 17, 15, 20)
    a("s_branch P_a2")
    a("P_w13:")
    a("s_cmp_ge_u32 s2, 57\ns_cselect_b32 s36, s58, s56\ns_cselect_b32 s37, s59, s57\ns_cselect_b32 s40, 16, 0\ns_cselect_b32 s33, 57, 30\ns_sub_u32 s33, s2, s33")
    srd(a, 12, 36, 640*1728*2)
    a("s_mov_b32 s20, 3456\ns_lshl_b32 s35, s33, 4")
    a("v_lshl_add_u32 v3, v2, 1, s35\nv_add_u32 v4, 1, v3\nv_and_b32 v5, 15, v0\nv_add_u32 v5, s35, v5")
    map_w13(a, 3, 10, 11, 12, 20); map_w13(a, 4, 13, 14, 12, 20); map_w13(a, 5, 16, 17, 15, 20)
    a("P_a2:")
    a("""s_lshl_b32 s21, s20, 3
    v_mul_lo_u32 v6, v1, s21
    v_lshl_add_u32 v6, v2, 4, v6
    s_lshl_b32 s21, s33, 7
    v_add_u32 v6, s21, v6
    s_lshl_b32 s21, s20, 2
    v_add_u32 v7, s21, v6
    s_mul_i32 s21, s20, 320
    v_add_u32 v8, s21, v6
    v_add_u32 v9, s21, v7
    v_lshrrev_b32 v20, 1, v1
    v_and_b32 v21, 1, v1
    v_lshlrev_b32 v21, 9, v21
    v_add_u32 v10, v10, v21
    v_add_u32 v13, v13, v21
    v_mad_u32_u24 v10, v20, v11, v10
    v_mad_u32_u24 v13, v20, v14, v13
    v_mul_u32_u24 v11, 20, v11
    v_mul_u32_u24 v14, 20, v14
    v_add_u32 v11, v10, v11
    v_add_u32 v14, v13, v14
    s_mov_b32 s39, 1
    s_branch P_common""")
    a("P_n:")
    a("""v_mul_u32_u24 v1, 205, v0
    v_lshrrev_b32 v1, 14, v1
    v_mul_u32_u24 v2, 80, v1
    v_sub_u32 v2, v0, v2
    v_mul_u32_u24 v3, 205, v2
    v_lshrrev_b32 v3, 11, v3
    v_mul_u32_u24 v4, 10, v3
    v_sub_u32 v4, v2, v4
    s_mov_b32 s20, 1280
    s_cmp_ge_u32 s2, 94
    s_cselect_b32 s36, s60, s52
    s_cselect_b32 s37, s61, s53
    s_cselect_b32 s33, 10, 0
    s_cselect_b32 s34, 54, 20""")
    a(f"s_cselect_b32 s35, {Y.off['W2F']}, {Y.off['W2F']}\ns_cselect_b32 s35, s35, {Y.off['WOF']}")
    a(f"s_cselect_b32 s38, {1728*1280}, {1728*1280}\ns_cselect_b32 s38, s38, {640*1280}")
    a("s_sub_u32 s33, s2, s33\ns_sub_u32 s33, s33, 84")
    srd(a, 12, 36, "s38")
    a("""v_mul_lo_u32 v10, v3, s34
    s_lshl_b32 s21, s33, 1
    v_add_u32 v10, s21, v10
    v_mul_u32_u24 v10, 5, v10
    v_lshrrev_b32 v20, 2, v4
    v_lshlrev_b32 v20, 1, v20
    v_add_u32 v10, v10, v20
    v_and_b32 v21, 3, v4
    v_lshlrev_b32 v22, 3, v21
    v_lshlrev_b32 v21, 2, v21
    v_cmp_le_u32 vcc, 8, v4
    v_mov_b32 v23, 1024
    v_mov_b32 v24, 64
    v_cndmask_b32 v21, v21, v22, vcc
    v_cndmask_b32 v23, v23, v24, vcc
    v_lshl_add_u32 v21, v1, 4, v21
    v_lshlrev_b32 v10, 10, v10
    v_lshl_add_u32 v10, v21, 4, v10
    v_add_u32 v10, s35, v10
    v_add_u32 v13, v10, v23
    v_add_u32 v11, 5120, v10
    v_add_u32 v14, 5120, v13
    s_lshl_b32 s21, s33, 3
    v_add_u32 v20, s21, v1
    v_add_u32 v21, 4, v20
    s_cmp_ge_u32 s2, 94
    s_cbranch_scc1 P_w2""")
    for kg, A, B in ((20, 6, 7), (21, 8, 9)):
        a(f"""v_mul_u32_u24 v22, 205, v{kg}
        v_lshrrev_b32 v22, 10, v22
        v_mul_u32_u24 v23, 5, v22
        v_sub_u32 v23, v{kg}, v23
        v_mul_u32_u24 v22, 40, v22
        v_lshrrev_b32 v24, 1, v23
        v_mul_u32_u24 v24, 20, v24
        v_and_b32 v25, 1, v23
        v_lshl_add_u32 v24, v25, 2, v24
        v_cmp_eq_u32 vcc, 4, v23
        v_mov_b32 v25, 16
        v_mov_b32 v26, 8
        v_mov_b32 v27, 20
        v_cndmask_b32 v24, v24, v25, vcc
        v_cndmask_b32 v26, v26, v27, vcc
        v_add_u32 v{A}, v22, v24
        v_add_u32 v{B}, v{A}, v26""")
    a("s_branch P_n2\nP_w2:")
    a("v_lshlrev_b32 v6, 3, v20\nv_add_u32 v7, 4, v6\nv_lshlrev_b32 v8, 3, v21\nv_add_u32 v9, 4, v8")
    a("P_n2:")
    for r in (6, 7, 8, 9):
        a(f"v_mul_u32_u24 v{r}, 1280, v{r}\nv_lshl_add_u32 v{r}, v2, 4, v{r}")
    a("s_mov_b32 s39, 0")
    a("P_common:")
    a("s_mov_b32 s21, 0\ns_lshl_b32 s22, s20, 1\ns_add_u32 s23, s22, s20")
    so = ["s21", "s20", "s22", "s23"]
    for u in range(2):
        for r in range(8):
            a(f"buffer_load_dwordx4 {vr(32+u*32+r*4)}, v{6+u*2+(r>>2)}, s[12:15], {so[r&3]} offen")
    for i in range(8): a(f"v_mov_b32 v{20+i}, 0")
    for u in range(2):
        a(f"s_waitcnt vmcnt({8 if u==0 else 8})")
        for i in range(8):
            o = 96+u*32+i*4
            for p in range(4):
                a(f"v_perm_b32 v{o+p}, v{32+u*32+(2*p+1)*4+(i>>1)}, v{32+u*32+2*p*4+(i>>1)}, s{30+(i&1)}")
            a(f"buffer_store_dwordx4 {vr(o)}, v{(10,13)[i>>2]+u}, s[8:11], 0 offen offset:{(i&3)*16}")
        for p in range(4):
            for i in range(8):
                a(f"v_dot2c_f32_bf16 v{20+i}, s32, v{96+u*32+i*4+p}")
    a("s_cmp_eq_u32 s39, 0\ns_cbranch_scc1 P_end")
    a("v_lshlrev_b32 v1, 5, v0\ns_nop 2\nds_write_b128 v1, v[20:23]\nds_write_b128 v1, v[24:27] offset:16")
    a("s_waitcnt lgkmcnt(0)\ns_barrier")
    a("v_cmp_gt_u32 vcc, 16, v0\ns_and_saveexec_b64 s[24:25], vcc\ns_cbranch_execz P_end")
    a("v_lshlrev_b32 v1, 4, v0")
    for k in range(40):
        a(f"ds_read_b128 {vr(32+(k%20)*4)}, v1 offset:{k*256}")
        if k % 20 == 19:
            a("s_waitcnt lgkmcnt(0)")
            for kk in range(20):
                if k == 19 and kk == 0:
                    a("v_mov_b32 v20, v32\nv_mov_b32 v21, v33\nv_mov_b32 v22, v34\nv_mov_b32 v23, v35")
                else:
                    a(f"v_pk_add_f32 v[20:21], v[20:21], {vr(32+kk*4,2)}\nv_pk_add_f32 v[22:23], v[22:23], {vr(34+kk*4,2)}")
    a("buffer_store_dwordx4 v[20:23], v15, s[8:11], 0 offen")
    a("s_branch P_end")
    a("P_x:")
    a("s_cmp_ge_u32 s2, 185\ns_cbranch_scc1 P_flags")
    srd(a, 12, 48, 2048*1280)
    a("v_cmp_gt_u32 vcc, 256, v0\ns_and_saveexec_b64 s[24:25], vcc\ns_cbranch_execz P_end")
    a(f"""s_sub_u32 s33, s2, 121
    v_lshrrev_b32 v1, 5, v0
    v_and_b32 v2, 31, v0
    s_mul_i32 s21, s33, 40960
    v_mul_u32_u24 v3, 1280, v2
    v_mul_u32_u24 v4, 160, v1
    v_add_u32 v3, v3, v4
    v_mul_u32_u24 v4, 5120, v1
    v_lshl_add_u32 v4, v2, 4, v4
    s_add_u32 s22, s21, {Y.off['XF']}
    s_add_u32 s23, s22, 2560
    v_lshlrev_b32 v5, 14, v1
    v_lshl_add_u32 v5, v2, 3, v5
    s_lshl_b32 s26, s33, 8
    s_add_u32 s26, s26, {Y.off['ST']}
    v_mov_b32 v20, 0
    v_mov_b32 v21, 0""")
    for p in range(10): a(f"buffer_load_dwordx4 {vr(32+p*4)}, v3, s[12:15], s21 offen offset:{p*16}")
    for p in range(10):
        a(f"s_waitcnt vmcnt(9)")
        a(f"buffer_store_dwordx4 {vr(32+p*4)}, v4, s[8:11], s{22+p//5} offen offset:{(p%5)*512}")
        for q in range(4):
            a(f"v_dot2c_f32_bf16 v20, s32, v{32+p*4+q}\nv_dot2c_f32_bf16 v21, v{32+p*4+q}, v{32+p*4+q}")
    a("s_nop 2\nbuffer_store_dwordx2 v[20:21], v5, s[8:11], s26 offen")
    a("s_branch P_end")
    a("P_flags:")
    a(f"v_lshlrev_b32 v1, 7, v0\nv_mov_b32 v2, 0\ns_mov_b32 s21, {Y.off['FLAGS']}\ns_add_u32 s22, s21, 40960\ns_add_u32 s23, s22, 40960")
    for s in (21, 22, 23): a(f"buffer_store_dword v2, v1, s[8:11], s{s} offen")
    a("P_end:\ns_endpgm")
```

```python
import sys
sys.path.insert(0, "gen")
from asmlib import *
import prep, main_k, hazard
NAME = "interleave_layers__sliding_block__glu_gated_swiglu__prompt"
def build(path, **cfg):
    main_k.CFG.update(cfg)
    a = Asm()
    a(f"; @launch kernel=prep_kernel grid=({prep.PREP_WGS},1,1) block=(320,1,1) lds=10240")
    a(f"; @launch kernel={NAME}_kernel grid=(256,1,1) block=(256,1,1) lds=163840")
    a('.amdgcn_target "amdgcn-amd-amdhsa--gfx950"\n.text')
    prep.gen_prep(a, "prep_kernel")
    main_k.gen_main(a, NAME+"_kernel")
    a('.section .rodata,"a"')
    a(kdesc("prep_kernel", 160, 160, 72)); a(kdesc(NAME+"_kernel", 512, 256, 96))
    lines, added = hazard.fix(a.L)
    open(path, "w").write("\n".join(lines)+"\n")
    print("wrote", path, "lines", len(lines), "nops added", added)
if __name__ == "__main__":
    build(f"cdna_kernels/{NAME}.s")
    build("diag.s", ts=True)
```

```python
import numpy as np
S, D, F, H, DH = 2048, 640, 1728, 32, 20
def al(x, a=4096): return (x + a - 1)//a*a
off = {}
cur = 0
def alloc(name, n):
    global cur
    off[name] = cur; cur = al(cur + n)
NK = 7
alloc("FLAGS", 2*NK*16*8192)
alloc("WQ", 16*163840)
alloc("WOF", 8*20*5*1024)
alloc("W13F", 16*280*1024)
alloc("W2F", 8*54*5*1024)
alloc("PFLAG", 16*8192)
alloc("CSP", 257*1408)
alloc("CSW", 256*3072)
XFSZ = 64*40*1024
STSZ = 8*2048*8
KVB = 5632
alloc("XF", 4*XFSZ)
alloc("ST", 4*STSZ)
KB, VB = 2560, 3072
alloc("KX", 2*16*64*KB)
alloc("VX", 2*16*64*VB)
OFSZ = 128*80*256
alloc("OF", 2*OFSZ)
HFSZ = 128*216*256
alloc("HF", 2*HFSZ)
alloc("TS", 256*128*8)
WS_USED = cur
def qkv_chunk(q4):
    sec, r = divmod(q4, 160); head, dc = divmod(r, 5); g, hb = head >> 1, head & 1
    if dc < 4:
        if sec == 1: return g, 0, 16*hb+4*dc
        if sec == 2: return g, 1, 16*hb+4*dc
        return (g, 2, 16+4*dc) if hb == 0 else (g, 3, 4*dc)
    if sec == 1: return g, 2, 4*hb
    if sec == 2: return g, 2, 8+4*hb
    return g, 3, 16+4*hb
def wq_seq(t, ks): return (2*ks, 80+ks, 2*ks+1, 120+ks)[t]
def h_src(p):
    w = min(p//28, 3); r = p-28*w; n = 7 if w < 3 else 6
    cc, lt = (r >> 2, r & 3) if r < 16 else ((r-16)//(n-4), 4+(r-16) % (n-4))
    return 28*w+cc*n+lt
H_PERM = np.array([h_src(p)*16+i for p in range(108) for i in range(16)])
def w13_ct(ft):
    return (ft//7, ft % 7) if ft < 84 else (12+(ft-84)//6, (ft-84) % 6)
def w13_seq(lt, ks):
    return ks*4+lt if lt < 4 else 160+ks*3+(lt-4)
def ncol_chunk(q4):
    j, r = divmod(q4, 20)
    if r < 16: return j, 2*(r >> 3)+(r & 1), 4*((r & 7) >> 1)
    return j, 4, 4*(r-16)
def wo_rows(kg):
    g, s = divmod(kg, 5)
    if s < 4: b, d = 40*g+20*(s >> 1)+4*(s & 1), 8
    else: b, d = 40*g+16, 20
    return [b+i for i in range(4)]+[b+d+i for i in range(4)]
WO_KPERM = np.array([r for kg in range(80) for r in wo_rows(kg)])
def model_WQ(w):
    o = np.zeros(16*163840//2, np.uint16); v = np.zeros_like(o, bool)
    for q4 in range(480):
        g, t, m = qkv_chunk(q4)
        for kg in range(80):
            ks, h = kg >> 1, kg & 1
            fr = wq_seq(t, ks)
            for i in range(4):
                a = (g*163840+fr*1024+(h*32+m+i)*16)//2
                o[a:a+8] = w[8*kg:8*kg+8, 4*q4+i]; v[a:a+8] = True
    return o, v
def model_W13(w1, w3):
    o = np.zeros(16*280*1024//2, np.uint16); v = np.zeros_like(o, bool)
    for s, w in enumerate((w1, w3)):
        for q4 in range(432):
            ft, fc = q4 >> 2, q4 & 3
            m = 4*[0, 2, 1, 3][fc]+16*s
            c, lt = w13_ct(ft)
            for kg in range(80):
                ks, h = kg >> 1, kg & 1
                for i in range(4):
                    a = (c*280*1024+w13_seq(lt, ks)*1024+(h*32+m+i)*16)//2
                    o[a:a+8] = w[8*kg:8*kg+8, 4*q4+i]; v[a:a+8] = True
    return o, v
def model_WN(w, nks):
    o = np.zeros(8*nks*5*512, np.uint16)
    for q4 in range(160):
        j, nt, m = ncol_chunk(q4)
        for kg in range(nks*4):
            for i in range(4):
                a = (((j*nks+(kg >> 2))*5+nt)*1024+((kg & 3)*16+m+i)*16)//2
                o[a:a+8] = w[8*kg:8*kg+8, 4*q4+i]
    return o
def to_XF(x):
    return x.reshape(64, 32, 40, 2, 8).transpose(0, 2, 3, 1, 4).reshape(-1)
def from_XF(a):
    return a.reshape(64, 40, 2, 32, 8).transpose(0, 3, 1, 2, 4).reshape(2048, 640)
def from_TF(a, nkg):
    return a.reshape(128, nkg, 16, 8).transpose(0, 2, 1, 3).reshape(2048, nkg*8)
def cs_index(m): return ((m >> 2) & 1)*16+4*(m >> 3)+(m & 3)
```

```python
from asmlib import *
import layout as Y
import struct, prep2
O = Y.off
def f32(x): return "0x%08x" % struct.unpack("<I", struct.pack("<f", x))[0]
LOG2E = 1.4426950408889634
WS = "s[8:11]"; OUT = "s[12:15]"
sI, sC, sW, sL, sJ, sTH, sFO = 16, 17, 18, 19, 20, 21, 22
RES = 236
M32 = "v_mfma_f32_32x32x16_bf16"; M8 = "v_mfma_f32_32x32x8_bf16"; M16 = "v_mfma_f32_16x16x32_bf16"
CFG = dict(map="pair", ts=False, psl=3, fst=(), qst=(), ksig=150, wqk=25, vpoll=4, w2e=3, hpeek=270, lim=2.0**40, hsig=252, lsig=12, lpeek=20, lpoll=25)

def ldsaddr(byte):
    return 1+byte//65536, byte % 65536
STN = []
def stamp(a, k):
    if not CFG["ts"]: return
    if k not in STN: STN.append(k)
    k = STN.index(k)
    L = a.lab("TS")
    a(f"s_waitcnt lgkmcnt(0)\ns_cmp_lg_u32 s{sW}, 0\ns_cbranch_scc1 {L}\ns_memrealtime s[90:91]\ns_memtime s[94:95]\ns_lshl_b32 s92, s2, 10\ns_lshl_b32 s93, s{sL}, 9\ns_add_u32 s92, s92, s93\ns_add_u32 s92, s92, {O['TS']+k*8}")
    a(f"s_waitcnt lgkmcnt(0)\nv_mov_b32 v234, s90\nv_mov_b32 v235, s91\ns_mov_b64 exec, 1\nbuffer_store_dwordx2 v[234:235], v4, {WS}, s92 offen\ns_nop 1\nv_mov_b32 v234, s94\nv_mov_b32 v235, s95\nbuffer_store_dwordx2 v[234:235], v4, {WS}, s92 offen offset:256\ns_mov_b64 exec, -1\ns_branch {L}x")
    a(f"{L}:\ns_mov_b32 s92, 0x7fffff00\nbuffer_store_dwordx2 v[234:235], v4, {WS}, s92 offen\nbuffer_store_dwordx2 v[234:235], v4, {WS}, s92 offen\n{L}x:")
    a.vq.append(None); a.vq.append(None); a.lq = []

class Fill:
    def __init__(s): s.q = []; s.bal = 0
    def __call__(s, t):
        for ln in t.split("\n"):
            ln = ln.strip()
            if ln: s.q.append((8 if ln.startswith(("v_exp", "v_rcp", "v_rsq")) else 4, lambda a, ln=ln: a(ln)))
    def vm(s, t, tag=None): s.q.append((8, lambda a: a.vm(t, tag)))
    def ds(s, t, tag=None): s.q.append((4, lambda a: a.ds(t, tag)))
    def vwait(s, tag): s.q.append((0, lambda a: a.vwait(tag)))
    def lwait(s, tag): s.q.append((0, lambda a: a.lwait(tag)))
    def gap(s, n): s.q.append((n, lambda a: None))
    def emit(s, a, budget):
        s.bal += budget
        while s.q and s.bal > 0:
            c, f = s.q.pop(0); f(a); s.bal -= c
    def flush(s, a): s.emit(a, 1 << 30)
class Loads:
    def __init__(s): s.q = []
    def add(s, pre, ins, tag): s.q.append((pre, ins, tag))
    def dma(s, sbase, slds, go, lo, n, tag, sc="sc1"):
        for q in range(n):
            pre = f"s_add_u32 s28, s{sbase}, {go+q*1024}\ns_add_u32 m0, s{slds}, {lo+q*1024}" if q % 4 == 0 else ""
            s.add(pre, f"buffer_load_dwordx4 v1, {WS}, s28 offen offset:{(q%4)*1024} {sc} lds".replace("  ", " "), tag)
    def lin(s, dst, sbase, rel, n, tagf, sc="sc1", tmp=29):
        for i in range(n):
            pre = f"s_add_u32 s{tmp}, s{sbase}, {rel+i*1024}" if i % 4 == 0 else ""
            s.add(pre, f"buffer_load_dwordx4 {dst(i)}, v1, {WS}, s{tmp} offen offset:{(i%4)*1024} {sc}".rstrip(), tagf(i))
    def pop(s, a, n=1):
        for _ in range(n):
            if not s.q: return
            pre, ins, tag = s.q.pop(0)
            if pre: a(pre)
            a.vm(ins, tag)
    def flush(s, a): s.pop(a, 1 << 30)
def flagbase(a, d, kind, lsub=0):
    a(f"s_mul_i32 s{d}, s{sL}, 917504\ns_lshl_b32 s31, s{sI}, 13\ns_add_u32 s{d}, s{d}, s31\ns_add_u32 s{d}, s{d}, {O['FLAGS']+kind*131072-lsub*917504}")
def signal(a, kind, tag=None):
    flagbase(a, 30, kind)
    a(f"s_add_u32 s30, s30, s{sFO}\nv_mov_b32 v14, s25")
    if tag: a.vwait(tag)
    else: a.vwait_all()
    a("s_mov_b64 exec, 1")
    a.vm(f"buffer_store_dword v14, v4, {WS}, s30 offen sc1")
    a("s_mov_b64 exec, -1")
    stamp(a, f"sig{kind}")
def peek(a, mask, R=224):
    a(f"v_mov_b32 v{R}, s25\ns_mov_b64 exec, {mask}")
    a.vm(f"buffer_load_dword v{R}, v{R+1}, {WS}, s24 offen sc1", "pk")
    a("s_mov_b64 exec, -1")
def check(a, mask, R=224):
    L = a.lab("PL")
    a.vwait("pk")
    a(f"""v_cmp_ne_u32 vcc, s25, v{R}
    s_cbranch_vccz {L}_k
    s_mov_b32 s32, 0x40000
    s_mov_b64 exec, {mask}
    {L}_p:
    buffer_load_dword v{R}, v{R+1}, {WS}, s24 offen sc1
    s_sub_u32 s32, s32, 1
    s_cbranch_scc1 {L}_d
    s_waitcnt vmcnt(0)
    v_cmp_ne_u32 vcc, s25, v{R}
    s_cbranch_vccnz {L}_p
    {L}_d:
    s_mov_b64 exec, -1
    {L}_k:""")
def wait_x(a, kind, lsub=0):
    flagbase(a, 24, kind, lsub)
    a(f"""s_lshr_b32 s31, s{sW}, 1
    s_lshl_b32 s31, s31, 11
    s_add_u32 s24, s24, s31
    s_and_b32 s31, s{sW}, 1
    s_lshl_b32 s31, s31, 8
    s_add_u32 s24, s24, s31
    v_and_b32 v225, 4, v5
    v_lshlrev_b32 v225, 10, v225
    v_and_b32 v224, 3, v5
    v_lshl_add_u32 v225, v224, 9, v225
    v_bfe_u32 v224, v5, 3, 1
    v_lshl_add_u32 v225, v224, 7, v225""")
    peek(a, "0xffff"); check(a, "0xffff")
def peek_k(a, kind):
    flagbase(a, 24, kind)
    a(f"""s_lshl_b32 s31, s{sTH}, 8
    s_add_u32 s24, s24, s31
    s_lshl_b32 s31, s{sW}, 11
    s_add_u32 s24, s24, s31
    v_and_b32 v225, 3, v5
    v_lshlrev_b32 v225, 9, v225
    v_bfe_u32 v224, v5, 2, 1
    v_lshl_add_u32 v225, v224, 7, v225""")
    peek(a, "0xff")
def x_loads(a, xadd, csbase, ntile, csreg):
    a(f"""s_lshl_b32 s35, s{sL}, 1
    s_add_u32 s35, s35, {xadd}
    s_mul_i32 s33, s35, {Y.XFSZ}
    s_lshl_b32 s34, s{sI}, 2
    s_add_u32 s34, s34, s{sW}
    s_mul_i32 s36, s34, 40960
    s_add_u32 s38, s33, s36
    s_mul_i32 s35, s35, {Y.STSZ}
    s_lshl_b32 s34, s34, 8
    s_add_u32 s39, s35, s34
    s_add_u32 s37, s88, {csbase}""")
    X = Loads(); X.lin(lambda i: ar(4*i), 38, O['XF'], 40, lambda i: f"x{i}", "sc1")
    m = Loads()
    for q in range(4): m.add(f"s_add_u32 s31, s39, {O['ST']+q*16384}", f"buffer_load_dwordx2 {vr(224+2*q,2)}, v7, {WS}, s31 offen sc1", "st")
    for t in range(ntile):
        m.add("v_lshlrev_b32 v15, 24, v6\nv_lshl_add_u32 v15, v5, 3, v15" if t == 0 else "", f"buffer_load_dwordx2 {vr(csreg+2*t,2)}, v15, {WS}, s37 offen offset:{t*256} sc1", "cs")
    X.q = X.q[:16]+m.q+X.q[16:]
    return X
def stats_fill(f):
    f.vwait("st")
    f(f"""v_add_f32 v224, v224, v226
    v_add_f32 v225, v225, v227
    v_add_f32 v228, v228, v230
    v_add_f32 v229, v229, v231
    v_add_f32 v224, v224, v228
    v_add_f32 v225, v225, v229
    v_mov_b32 v226, v224
    v_mov_b32 v227, v225
    v_permlane32_swap_b32 v224, v226
    v_permlane32_swap_b32 v225, v227
    v_add_f32 v224, v224, v226
    v_add_f32 v225, v225, v227
    v_mul_f32 v224, {f32(-1/640)}, v224
    v_mul_f32 v225, {f32(1/640)}, v225
    v_fma_f32 v225, -v224, v224, v225
    v_cvt_pk_bf16_f32 v230, v224, v224
    v_max_f32 v225, 0, v225
    v_and_b32 v226, 0xffff0000, v230
    v_add_f32 v225, {f32(1e-5)}, v225
    v_sub_f32 v226, v224, v226
    v_rsq_f32 v232, v225
    v_cvt_pk_bf16_f32 v231, v226, v4""")
def gemm(a, steps, ring0, pre, post, nring=8, ahead=6):
    n = len(steps)
    def rd(i):
        pre(i)
        b, o = ldsaddr(steps[i][0])
        a.ds(f"ds_read_b128 {vr(ring0+(i%nring)*4)}, v{b} offset:{o}", f"w{i}")
    for i in range(ahead): rd(i)
    for i in range(n):
        _, acc, xi = steps[i]
        a.vwait(f"x{xi}"); a.lwait(f"w{min(i | 1, n-1)}")
        a(f"{M32} {vr(acc,16)}, {vr(ring0+(i%nring)*4)}, {ar(4*xi)}, {vr(acc,16) if xi else 0}")
        if i+ahead < n: rd(i+ahead)
        post(i)
def csfix(a, acc, cs): a(f"{M8} {vr(acc,16)}, {vr(cs,2)}, v[230:231], {vr(acc,16)}")
def wq_loads(a, part, void):
    f0, n = ((0, 25), (100, 5), (120, 10))[part]
    a(f"s_mul_i32 s54, s{sC}, 163840\ns_mul_i32 s55, s{sW}, {n*1024}\ns_add_u32 s54, s54, s55")
    if void: a(f"s_lshl_b32 s31, s{sL}, 30\ns_add_u32 s54, s54, s31")
    W = Loads(); W.dma(54, 55, O['WQ']+f0*1024, f0*1024, n, "wq" if part < 2 else "wq3"); return W
def w13_stage(Q, s): Q.dma(40, 41, s*20480, ((s+4) % 8)*20480, 5, f"s{s}")

def wofrag(i): return ar(160+4*i) if i < 24 else "v[140:143]"
KB, VB, VL = Y.KB, Y.VB, 12*Y.KB
def halo_peek(a, kind):
    a(f"""s_lshr_b32 s33, s{sW}, 1
    s_add_u32 s23, s33, s{sI}
    s_lshl_b32 s33, s23, 13
    s_mul_i32 s24, s{sL}, 917504
    s_add_u32 s24, s24, s33
    s_lshl_b32 s33, s{sC}, 9
    s_add_u32 s24, s24, s33
    s_and_b32 s33, s{sW}, 1
    s_lshl_b32 s33, s33, 8
    s_add_u32 s24, s24, s33
    s_add_u32 s24, s24, {O['FLAGS']+kind*131072-16384}
    v_lshlrev_b32 v225, 7, v5""")
    peek(a, "3")
def halo(a, sbase, blk, lds, L):
    a(f"s_cmp_lt_u32 s23, 2\ns_cbranch_scc1 {L}")
    check(a, "3")
    a(f"s_mul_i32 s34, s{sW}, {2*blk}\ns_add_u32 s33, s{sbase}, s34")
    Hl = Loads(); Hl.dma(33, 34, -8*blk, lds, 2*blk//1024, "halo", "sc1"); Hl.flush(a)
    a(f"{L}:")
def scpk(f, d, r0, n, sc):
    for i in range(n): f(f"v_mul_f32 v{r0+2*i}, v{r0+2*i}, v{sc}\nv_mul_f32 v{r0+2*i+1}, v{r0+2*i+1}, v{sc}\nv_cvt_pk_bf16_f32 v{d+i}, v{r0+2*i}, v{r0+2*i+1}")
def cs_issue(a, t0, r0):
    a(f"s_mul_i32 s30, s{sC}, 22528\ns_lshl_b32 s31, s{sW}, 7\ns_add_u32 s30, s30, s31\ns_add_u32 s30, s30, {O['CSP']+t0*128}\nv_mul_u32_u24 v14, 176, v6\nv_and_b32 v15, 31, v5\nv_lshl_add_u32 v14, v15, 2, v14")
    for q in range(8):
        if q and q % 2 == 0: a("s_add_u32 s30, s30, 2816")
        a.vm(f"buffer_load_dword v{r0+q}, v14, {WS}, s30 offen offset:{(q%2)*1408} sc1", "csp")
def cs_fin(a, t0, r0, tag=None):
    a(f"""v_pk_add_f32 {vr(r0,2)}, {vr(r0,2)}, {vr(r0+2,2)}
    v_pk_add_f32 {vr(r0+4,2)}, {vr(r0+4,2)}, {vr(r0+6,2)}
    v_pk_add_f32 {vr(r0,2)}, {vr(r0,2)}, {vr(r0+4,2)}
    v_add_f32 v{r0}, v{r0}, v{r0+1}
    v_mov_b32 v{r0+1}, v{r0}
    v_permlane32_swap_b32 v{r0}, v{r0+1}
    v_add_f32 v{r0}, v{r0}, v{r0+1}
    v_cvt_pk_bf16_f32 v{r0+3}, v{r0}, v{r0}
    v_and_b32 v{r0+1}, 0xffff0000, v{r0+3}
    v_sub_f32 v{r0+1}, v{r0}, v{r0+1}
    v_cvt_pk_bf16_f32 v{r0+2}, v{r0}, v{r0+1}
    v_and_b32 v{r0+3}, 0xffff, v{r0+3}
    v_lshlrev_b32 v15, 24, v6
    v_lshl_add_u32 v15, v5, 3, v15
    s_lshl_b32 s31, s{sW}, 8
    s_add_u32 s31, s31, s88""")
    a.vm(f"buffer_store_dwordx2 {vr(r0+2,2)}, v15, {WS}, s31 offen offset:{t0*256} sc1", tag)
def phase_qkv(a):
    X = x_loads(a, 0, 0, 4, 156)
    X.pop(a, 12)
    a.vwait("wq"); a("s_barrier")
    stamp(a, "qkv0")
    f1 = Fill()
    f1(f"""s_add_u32 s33, s{sW}, 8
    s_mul_i32 s34, s33, {KB}
    v_add_u32 v132, s34, v1
    v_lshrrev_b32 v133, 1, v1
    v_add_u32 v134, s34, v133
    s_mul_i32 s33, s33, {VB}
    s_add_u32 s33, s33, {VL}
    v_and_b32 v135, 31, v5
    v_mul_u32_u24 v135, 48, v135
    v_add_u32 v135, s33, v135
    v_lshrrev_b32 v136, 3, v6
    v_add_u32 v136, v135, v136
    v_mul_u32_u24 v137, 24, v6
    v_add_u32 v137, v135, v137
    v_add_u32 v135, s33, v1
    v_mov_b32 v138, 0x3f80
    v_mov_b32 v139, 0
    s_lshl_b32 s33, s{sL}, 4
    s_add_u32 s33, s33, s{sC}
    s_lshl_b32 s33, s33, 4
    s_add_u32 s33, s33, s{sI}
    s_lshl_b32 s33, s33, 2
    s_mul_i32 s44, s33, {KB}
    s_add_u32 s44, s44, {O['KX']}
    s_mul_i32 s45, s33, {VB}
    s_add_u32 s45, s45, {O['VX']}
    s_mul_i32 s46, s{sW}, {KB}
    s_add_u32 s46, s46, s44
    s_mul_i32 s47, s{sW}, {VB}
    s_add_u32 s47, s47, s45
    s_mul_i32 s33, s{sJ}, 102400
    s_mul_i32 s34, s{sW}, 25600
    s_add_u32 s48, s33, s34""")
    f1.gap(150); stats_fill(f1); f1(f"v_mul_f32 v233, {f32(LOG2E*20**-0.5)}, v232")
    f2 = Fill(); f2.gap(24)
    scpk(f2, 112, 16, 4, 232); f2.vm(f"buffer_store_dwordx4 v[112:115], v1, {WS}, s46 offen sc1", "ks")
    scpk(f2, 116, 24, 4, 232); f2.vm(f"buffer_store_dwordx4 v[116:119], v1, {WS}, s46 offen offset:1024 sc1", "ks")
    scpk(f2, 120, 48, 2, 232); f2.vm(f"buffer_store_dwordx2 v[120:121], v133, {WS}, s46 offen offset:2048 sc1", "ks")
    nks = len(f2.q)
    f2.ds("ds_write_b128 v132, v[112:115]"); f2.ds("ds_write_b128 v132, v[116:119] offset:1024"); f2.ds("ds_write_b64 v134, v[120:121] offset:2048")
    scpk(f2, 216, 56, 4, 233)
    nks = len(f2.q)-nks
    f3 = Fill()
    scpk(f3, 122, 52, 2, 232)
    f3.ds("ds_write_b64 v137, v[122:123] offset:32"); f3.ds("ds_write_b64 v137, v[138:139] offset:40")
    for hd in range(2):
        scpk(f3, 124+4*hd, 32+8*hd, 4, 232)
        f3.ds(f"ds_write_b64 v136, {vr(124+4*hd,2)} offset:{hd*1536}"); f3.ds(f"ds_write_b64 v136, {vr(126+4*hd,2)} offset:{hd*1536+16}")
    for q in range(3): f3.ds(f"ds_read_b128 {vr(144+4*q)}, v135 offset:{q*1024}", f"vb{q}")
    f3.gap(48)
    for q in range(3): f3.lwait(f"vb{q}"); f3.vm(f"buffer_store_dwordx4 {vr(144+4*q)}, v1, {WS}, s47 offen offset:{q*1024} sc1", "vs")
    Q = wq_loads(a, 2, False); Q.lin(wofrag, 48, O['WOF'], 25, lambda i: "wo")
    seq = []; kv = 0
    for ks in range(40):
        seq += [(0, ks), (2, ks)]
        if ks % 3 != 0: seq.append((1, kv)); kv += 1
    e1 = len(seq)-1
    seq += [(1, ks) for ks in range(kv, 40)]+[(3, ks) for ks in range(40)]
    steps = [(Y.wq_seq(t, ks)*1024, 16+16*t, ks) for t, ks in seq]
    def pre(i):
        if i == 120: a.vwait("wq3"); a("s_barrier")
    def post(i):
        if i in CFG["qst"]: stamp(a, f"q{i}")
        if i <= e1:
            if i % 2 == 0 or X.q and "x2" in X.q[0][1]:
                if X.q: X.pop(a)
                elif len(Q.q) > 17:
                    if len(Q.q) == 25: check(a, "0xffffffff", 220)
                    Q.pop(a)
            if i == 45:
                a(f"s_and_b32 s24, s{sC}, 11\ns_lshl_b32 s24, s24, 9\ns_add_u32 s24, s24, {O['PFLAG']+128}\nv_and_b32 v221, 15, v5\nv_lshlrev_b32 v221, 13, v221\nv_and_b32 v220, 16, v5\nv_lshl_add_u32 v221, v220, 7, v221")
                peek(a, "0xffffffff", 220)
            if i % 2: f1.emit(a, 10)
        if i == e1:
            assert not X.q and not f1.q and len(Q.q) == 17
            a.vwait("cs"); csfix(a, 16, 156); csfix(a, 48, 160); a("s_barrier")
        if i > e1:
            if len(f2.q) > nks or i < 120: f2.emit(a, 16)
            elif f3.q: f3.emit(a, 16)
            else: f2.emit(a, 12)
        if i == 119: csfix(a, 32, 158)
        if i == CFG["ksig"]: assert not f3.q; signal(a, 4, "ks")
    gemm(a, steps, 80, pre, post)
    csfix(a, 64, 162)
    assert not f2.q
    stamp(a, "qkvE")
    a.WO = Q
    a("s_nop 4")
    scpk(a, 220, 64, 4, 233); scpk(a, 230, 72, 2, 233)
    a(f"""v_cmp_gt_u32 vcc, 32, v5
    v_cndmask_b32 v228, 0, v230, vcc
    v_cndmask_b32 v229, 0, v231, vcc
    v_cndmask_b32 v230, v230, v4, vcc
    v_cndmask_b32 v231, v231, v4, vcc
    s_mul_i32 s33, s{sW}, {KB}
    v_add_u32 v130, s33, v1
    v_add_u32 v131, s33, v133
    s_mul_i32 s33, s{sW}, {VB}
    s_add_u32 s33, s33, {VL}
    v_bfe_u32 v132, v5, 2, 2
    v_lshrrev_b32 v133, 4, v6
    v_add_u32 v132, v132, v133
    v_mul_u32_u24 v132, 48, v132
    v_and_b32 v133, 3, v5
    v_lshlrev_b32 v134, 3, v133
    v_min_u32 v133, 1, v133
    v_lshlrev_b32 v133, 3, v133
    v_add_u32 v133, 32, v133
    v_and_b32 v135, 16, v5
    v_cmp_eq_u32 vcc, 0, v135
    v_cndmask_b32 v133, v133, v134, vcc
    v_add3_u32 v132, v132, v133, s33
    v_mov_b32 v135, {f32(-1e30)}
    v_mov_b32 v133, v135
    v_mov_b32 v134, v135
    s_mov_b32 s26, 0
    s_mul_i32 s49, s{sL}, {Y.OFSZ}
    s_lshl_b32 s35, s{sI}, 3
    s_lshl_b32 s33, s{sW}, 1
    s_add_u32 s35, s35, s33
    s_mul_i32 s35, s35, 20480
    s_add_u32 s49, s49, s35
    s_mul_i32 s35, s{sC}, 1280
    s_add_u32 s49, s49, s35
    s_add_u32 s49, s49, {O['OF']}""")

def msk(r): return f"s[{56+2*r}:{57+2*r}]"
def qk1(a, hd, b, S, cin): a(f"{M32} {vr(S,16)}, {ar(36*hd+4*b)}, {vr(216+4*hd)}, {cin}")
def qk2(a, hd, b, S): a(f"{M8} {vr(S,16)}, {ar(72+2*b,2)}, {vr(228+2*hd,2)}, {vr(S,16)}")
def phase_attn(a):
    def kread(hd, b): a.ds(f"ds_read_b128 {ar(36*hd+4*b)}, v130 offset:{b*KB+hd*1024}", f"k{hd}_{b}")
    def k2read(b): a.ds(f"ds_read_b64 {ar(72+2*b,2)}, v131 offset:{b*KB+2048}", f"k0_{b}")
    def vreg(hd, b): return 92+32*hd+8*(b % 4)
    def vread(hd, b, s):
        for p in range(2): a.ds(f"ds_read_b64_tr_b16 {ar(vreg(hd,b)+4*s+2*p,2)}, v132 offset:{b*VB+hd*1536+(16*s+8*p)*48}", f"v{hd}_{b}")
    def preg(hd, b): return 144+8*b if hd == 0 and b < 8 else 112+8*((b+hd) % 2)
    def pv(hd, b, s):
        if s == 0: a.lwait(f"v{hd}_{b}")
        Oa = vr(64+16*hd, 16)
        a(f"{M32} {Oa}, {ar(vreg(hd,b)+4*s)}, {vr(preg(hd,b)+4*s)}, {0 if b == 8 and s == 0 else Oa}")
    a(f"s_cmp_lg_u32 s{sL}, 0\ns_cbranch_scc1 L_c1")
    n0 = len(a.vq); cs_issue(a, 4, 144); cs_issue(a, 8, 152); del a.vq[n0:]
    a("L_c1:")
    halo_peek(a, 4)
    a("L_att:")
    L = a.lab("AT")
    kread(0, 8); k2read(8); kread(1, 8)
    for hd in range(2): vread(hd, 8, 0); vread(hd, 8, 1)
    for r in range(16): a(f"v_cndmask_b32 v{48+r}, v135, v4, {msk(r)}")
    a.lwait("k1_8")
    qk1(a, 0, 8, 16, "v[48:63]"); qk1(a, 1, 8, 32, "v[48:63]"); qk2(a, 0, 8, 16); qk2(a, 1, 8, 32)
    for hd in range(2):
        S = 16+16*hd; m = 128+hd
        a(f"v_max3_f32 v{m}, v{S}, v{S+1}, v{133+hd}")
        for r in range(2, 16, 2): a(f"v_max3_f32 v{m}, v{S+r}, v{S+r+1}, v{m}")
        a(f"v_mov_b32 v136, v{m}\nv_permlane32_swap_b32 v{m}, v136\nv_max_f32 v{m}, v{m}, v136\nv_sub_f32 v{m}, 0, v{m}")
    for hd in range(2):
        S = 16+16*hd
        for r in range(0, 16, 2): a(f"v_pk_add_f32 {vr(S+r,2)}, {vr(S+r,2)}, v[128:129] "+("op_sel_hi:[1,0]" if hd == 0 else "op_sel:[0,1] op_sel_hi:[1,1]"))
    for r in range(0, 16, 2): a(f"v_pk_add_f32 {vr(96+r,2)}, v[128:129], 0 op_sel_hi:[0,0]")
    a(f"s_cmp_lg_u32 s26, 0\ns_cbranch_scc1 {L}_nk")
    signal(a, 5, "vs")
    halo(a, 44, KB, 0, f"{L}_nk")
    stamp(a, "haloI")
    for hd in range(2):
        S = 16+16*hd
        for r in range(16): a(f"v_exp_f32 v{S+r}, v{S+r}")
        for i in range(8): a(f"v_cvt_pk_bf16_f32 v{preg(hd,8)+i}, v{S+2*i}, v{S+2*i+1}")
        pv(hd, 8, 0); pv(hd, 8, 1)
    a(f"s_cmp_lg_u32 s26, 0\ns_cbranch_scc1 {L}_nf")
    a.vwait_all(); a.lwait_all(); a("s_barrier")
    a(f"s_cmp_lg_u32 s{sL}, 0\ns_cbranch_scc1 L_c2")
    cs_fin(a, 4, 144); cs_fin(a, 8, 152); a.vq = []
    a("L_c2:")
    a(f"""s_cmp_ge_u32 s{sI}, 2
    s_cbranch_scc1 {L}_nf
    s_lshl_b32 s33, s{sI}, 2
    s_sub_u32 s33, 8, s33
    s_mul_i32 s34, s33, {KB}
    v_lshlrev_b32 v136, 3, v6
    v_add_u32 v136, s34, v136
    v_lshlrev_b32 v137, 2, v6
    v_add_u32 v137, s34, v137
    ds_read_b128 v[16:19], v136
    ds_read_b128 v[20:23], v136 offset:1024
    ds_read_b64 v[24:25], v137 offset:2048
    v_mov_b32 v28, 0
    v_mov_b32 v29, 0
    v_mov_b32 v30, 0
    v_mov_b32 v31, 0
    s_mov_b32 s35, s{sW}
    s_waitcnt lgkmcnt(0)
    {L}_fl:
    s_mul_i32 s34, s35, {KB}
    v_add_u32 v136, s34, v1
    v_lshrrev_b32 v137, 1, v1
    v_add_u32 v137, s34, v137
    ds_write_b128 v136, v[16:19]
    ds_write_b128 v136, v[20:23] offset:1024
    ds_write_b64 v137, v[24:25] offset:2048
    s_mul_i32 s34, s35, {VB}
    v_add_u32 v138, s34, v1
    ds_write_b128 v138, v[28:31] offset:{VL}
    ds_write_b128 v138, v[28:31] offset:{VL+1024}
    ds_write_b128 v138, v[28:31] offset:{VL+2048}
    s_add_u32 s35, s35, 4
    s_cmp_lt_u32 s35, s33
    s_cbranch_scc1 {L}_fl
    s_waitcnt lgkmcnt(0)
    s_barrier
    {L}_nf:""")
    stamp(a, "att0")
    for b in range(7, -1, -1): kread(0, b); k2read(b)
    U = [(0, b) for b in range(7, -1, -1)]+[(1, b) for b in range(7, -1, -1)]
    def q1(u):
        hd, b = U[u]; S = 16+16*(u % 3)
        if b == 0:
            for r in range(16): a(f"v_cndmask_b32 v{S+r}, v{128+hd}, v135, {msk(r)}")
        a.lwait(f"k{hd}_{b}"); qk1(a, hd, b, S, vr(S, 16) if b == 0 else "v[96:111]")
    def q2(u): qk2(a, U[u][0], U[u][1], 16+16*(u % 3))
    q1(0); q2(0); q1(1); q2(1)
    Q = a.WO; Q.q[0] = (f"s_add_u32 s29, s48, {O['WOF']+8192}",)+Q.q[0][1:]; w13_stage(Q, 0); w13_stage(Q, 1)
    for u in range(16):
        hd, b = U[u]; S = 16+16*(u % 3); P = preg(hd, b)
        if u == CFG["vpoll"]-3: halo_peek(a, 5)
        if u == CFG["vpoll"]:
            a(f"s_cmp_lg_u32 s26, 0\ns_cbranch_scc1 {L}_nv"); halo(a, 45, VB, VL, f"{L}_nv")
        if u == 8:
            a(f"s_cmp_lg_u32 s26, 0\ns_cbranch_scc1 {L}_nb"); a.vwait_all(); a(f"s_barrier\n{L}_nb:")
            stamp(a, "vbar")
        ms = []
        if u+2 < 16: ms += [lambda: q1(u+2), lambda: q2(u+2)]
        if u > 8: ms += [lambda: pv(0, b+1, 0), lambda: pv(1, b+1, 0), lambda: pv(0, b+1, 1), lambda: pv(1, b+1, 1)]
        pos = {2: (0, 8), 6: (0, 3, 6, 9, 12, 14), 4: (0, 4, 8, 12)}[len(ms)]
        for r in range(16):
            if r in pos: ms[pos.index(r)]()
            a(f"v_exp_f32 v{S+r}, v{S+r}")
            if r >= 3 and r % 2: a(f"v_cvt_pk_bf16_f32 v{P+(r-3)//2}, v{S+r-3}, v{S+r-2}")
            if u >= 8 and r % 4 == 1: vread(r//8, b, (r//4) % 2)
            if u == 5: a(f"v_mov_b32 v{96+r}, v129")
            if u not in (6, 7) and r % 8 == 7: Q.pop(a)
        a(f"v_cvt_pk_bf16_f32 v{P+7}, v{S+14}, v{S+15}")
        if u < 8: kread(1, b)
    assert not Q.q
    pv(0, 0, 0); pv(0, 0, 1); pv(1, 0, 0); pv(1, 0, 1)
    a(f"v_cmp_gt_u32 vcc, 32, v5\nv_cndmask_b32 v16, v72, v76, vcc\nv_rcp_f32 v18, v16")
    for hd in range(2):
        o = 64+16*hd
        if hd: a(f"v_cndmask_b32 v17, v88, v92, vcc\nv_rcp_f32 v18, v17\nv_add_f32 v16, v16, v17")
        for r in range(0, 12, 2): a(f"v_pk_mul_f32 {vr(o+r,2)}, {vr(o+r,2)}, v[18:19] op_sel_hi:[1,0]")
        for i in range(4): a(f"v_cvt_pk_bf16_f32 v{20+4*hd+i}, v{o+2*i}, v{o+1+2*i}")
        for i in range(2): a(f"v_cvt_pk_bf16_f32 v{28+2*hd+i}, v{o+8+2*i}, v{o+9+2*i}")
    a(f"v_cmp_nge_f32 vcc, {f32(CFG['lim'])}, v16\ns_cbranch_vccnz L_slow\nL_attdone:")
    for hd in range(2): a.vm(f"buffer_store_dwordx4 {vr(20+4*hd)}, v8, {WS}, s49 offen offset:{hd*512} sc1")
    a("s_mov_b32 exec_hi, 0")
    a.vm(f"buffer_store_dwordx4 v[28:31], v8, {WS}, s49 offen offset:1024 sc1")
    a("s_mov_b64 exec, -1")
    stamp(a, "attE")
    signal(a, 0)
    Q = Loads(); w13_stage(Q, 2); w13_stage(Q, 3); Q.flush(a)
def attn_slow(a):
    a("L_slow:\ns_cmp_lg_u32 s26, 0\ns_cbranch_scc1 L_attdone\ns_mov_b32 s26, 1")
    for hd in range(2):
        for b in range(8):
            if b == 0:
                for r in range(16): a(f"v_cndmask_b32 v{16+r}, v4, v135, {msk(r)}")
            qk1(a, hd, b, 16, "v[16:31]" if b == 0 else "0"); qk2(a, hd, b, 16)
            for r in range(0, 16, 2): a(f"v_max3_f32 v{133+hd}, v{16+r}, v{17+r}, v{133+hd}")
    a("s_branch L_att")

def rot_bases(a, stride, base):
    for k in range(4): a(f"s_add_u32 s31, s{sW}, {k+1}\ns_and_b32 s31, s31, 3\ns_mul_i32 s31, s31, {stride}\ns_add_u32 s31, s31, s33\ns_add_u32 s{44+k}, s31, {base}")
def part_fill(k, acc, lds):
    f = Fill(); f.gap(24)
    f(f"s_add_u32 s31, s{sW}, {k+1}\ns_and_b32 s31, s31, 3\ns_mul_i32 s31, s31, 15360\ns_add_u32 s31, s31, {lds+k*5120}\nv_add_u32 v226, s31, v1")
    for nt in range(5): f.ds(f"ds_write_b128 v226, {vr(acc+k*20+nt*4)} offset:{nt*1024}"); f.gap(12)
    return f
def n_epilogue(a, xadd, last, acc, rd, lds, Q):
    for r in range(0, 20, 2): a(f"v_pk_add_f32 {vr(RES+r,2)}, {vr(RES+r,2)}, {vr(acc+60+r,2)}")
    a(f"s_mul_i32 s33, s{sW}, 15360\ns_add_u32 s33, s33, {lds}\nv_add_u32 v176, s33, v1")
    Q.pop(a, 2)
    a.lwait_all(); a("s_barrier")
    for q in range(15): a.ds(f"ds_read_b128 {vr(rd+4*q)}, v176 offset:{q*1024}", f"r{q//5}")
    Q.pop(a, 2)
    a(f"""s_lshl_b32 s35, s{sL}, 1
    s_add_u32 s35, s35, {xadd}
    s_lshl_b32 s36, s{sI}, 3
    s_lshl_b32 s37, s{sTH}, 2
    s_add_u32 s36, s36, s37
    s_add_u32 s36, s36, s{sW}
    s_mul_i32 s33, s35, {Y.XFSZ}
    s_lshr_b32 s37, s36, 1
    s_mul_i32 s37, s37, 40960
    s_add_u32 s33, s33, s37
    s_and_b32 s37, s36, 1
    s_lshl_b32 s37, s37, 8
    s_add_u32 s33, s33, s37
    s_mul_i32 s37, s{sJ}, 5120
    s_add_u32 s33, s33, s37
    s_add_u32 s33, s33, {O['XF']}
    s_add_u32 s34, s33, 4096
    s_mul_i32 s35, s35, {Y.STSZ}
    s_lshl_b32 s37, s{sJ}, 14
    s_add_u32 s35, s35, s37
    s_lshl_b32 s37, s36, 7
    s_add_u32 s35, s35, s37
    s_add_u32 s35, s35, {O['ST']}""")
    for s in range(3):
        Q.pop(a)
        a.lwait(f"r{s}")
        for r in range(0, 20, 2): a(f"v_pk_add_f32 {vr(RES+r,2)}, {vr(RES+r,2)}, {vr(rd+s*20+r,2)}")
    for i in range(10): a(f"v_cvt_pk_bf16_f32 v{160+i}, v{RES+2*i}, v{RES+2*i+1}")
    if last: a(f"s_cmp_eq_u32 s{sL}, 1\ns_cbranch_scc1 L_final")
    a.vm(f"buffer_store_dwordx4 v[160:163], v10, {WS}, s33 offen sc1")
    a.vm(f"buffer_store_dwordx4 v[164:167], v10, {WS}, s33 offen offset:2048 sc1")
    a.vm(f"buffer_store_dwordx2 v[168:169], v11, {WS}, s34 offen sc1")
    a(f"v_pk_mul_f32 v[174:175], {vr(RES,2)}, {vr(RES,2)}\nv_pk_add_f32 v[172:173], {vr(RES,2)}, {vr(RES+2,2)}")
    for r in range(2, 20, 2):
        a(f"v_pk_fma_f32 v[174:175], {vr(RES+r,2)}, {vr(RES+r,2)}, v[174:175]")
        if r > 2: a(f"v_pk_add_f32 v[172:173], v[172:173], {vr(RES+r,2)}")
    a("v_add_f32 v172, v172, v173\nv_add_f32 v173, v174, v175")
    for op in ("v_permlane32_swap_b32", "v_permlane16_swap_b32"):
        a(f"v_mov_b32 v174, v172\nv_mov_b32 v175, v173\n{op} v172, v174\n{op} v173, v175\nv_pk_add_f32 v[172:173], v[172:173], v[174:175]")
    a("v_lshrrev_b32 v174, 1, v1\ns_mov_b64 exec, 0xffff")
    a.vm(f"buffer_store_dwordx2 v[172:173], v174, {WS}, s35 offen sc1")
    a("s_mov_b64 exec, -1")

def phase_wo(a):
    a(f"""s_mul_i32 s33, s{sL}, {Y.OFSZ}
    s_lshl_b32 s35, s{sI}, 3
    s_lshl_b32 s34, s{sTH}, 2
    s_add_u32 s35, s35, s34
    s_mul_i32 s35, s35, 20480
    s_add_u32 s33, s33, s35
    s_mul_i32 s35, s{sW}, 5120
    s_add_u32 s33, s33, s35""")
    rot_bases(a, 20480, O['OF'])
    for tt in range(4): a(f"s_add_u32 s{48+tt}, s{44+tt}, 4096")
    peek_k(a, 0); check(a, "0xff")
    stamp(a, "wo0")
    Q = Loads()
    for tt in range(4):
        for ks in range(5): Q.add("", f"buffer_load_dwordx4 {ar(ks*16+tt*4)}, v1, {WS}, s{(44 if ks<4 else 48)+tt} offen offset:{(ks%4)*1024} sc1", f"o{ks}_{tt}")
    Q.pop(a, 10)
    a("s_barrier")
    w2_loads(Q, 4)
    f = Fill()
    for tt in range(4):
        for ks in range(5):
            a.vwait(f"o{ks}_{tt}")
            for nt in range(5):
                acc = vr(16+tt*20+nt*4)
                a(f"{M16} {acc}, {wofrag(ks*5+nt)}, {ar(ks*16+tt*4)}, {'0' if ks==0 else acc}")
                if nt == 0: Q.pop(a)
                f.emit(a, 8)
        assert not f.q
        if tt < 3: f = part_fill(tt, 16, 0)
    for ks in range(CFG["w2e"]): w2_loads(Q, ks)
    stamp(a, "woE")
    n_epilogue(a, 1, False, 16, 96, 0, Q)
    stamp(a, "woEp")
    signal(a, 1)
    Q.flush(a)

def w2frag(ks, nt):
    if ks < 4: return ar(160+20*ks+4*nt)
    if ks == 4: return vr(192+4*nt)
    if ks < 11: return ar(20*(ks-5)+4*nt)
    return vr(16+20*(ks-11)+4*nt)
def w2_loads(Q, ks):
    for nt in range(5):
        pre = ""
        if nt % 4 == 0: pre = f"s_add_u32 s27, s52, {ks*5120+nt*1024}"+("\ns_add_u32 s27, s27, s53" if ks >= 12 else "")
        Q.add(pre, f"buffer_load_dwordx4 {w2frag(ks, nt)}, v1, {WS}, s27 offen offset:{(nt%4)*1024} sc1", f"W{ks}")
def phase_ffn1(a):
    a("s_barrier")
    Q = Loads()
    for s in range(4, 8): w13_stage(Q, s)
    Q.flush(a)
    a(f"""s_mul_i32 s42, s{sL}, {Y.HFSZ}
    s_lshl_b32 s35, s{sI}, 3
    s_lshl_b32 s33, s{sW}, 1
    s_add_u32 s35, s35, s33
    s_mul_i32 s35, s35, 55296
    s_add_u32 s42, s42, s35
    s_lshr_b32 s35, s{sC}, 2
    s_mul_i32 s35, s35, 14336
    s_add_u32 s42, s42, s35
    s_add_u32 s42, s42, {O['HF']}
    s_and_b32 s33, s{sC}, 3
    s_cmp_ge_u32 s{sC}, 12
    s_mov_b32 s35, 1536
    s_cselect_b32 s35, 1024, s35
    s_mul_i32 s35, s35, s33
    s_add_u32 s51, s42, s35
    s_add_u32 s51, s51, 8192
    s_lshl_b32 s33, s33, 11
    s_add_u32 s42, s42, s33
    s_mul_i32 s33, s{sL}, {Y.HFSZ}
    s_lshl_b32 s35, s{sI}, 3
    s_lshl_b32 s34, s{sTH}, 2
    s_add_u32 s35, s35, s34
    s_mul_i32 s35, s35, 55296
    s_add_u32 s33, s33, s35
    s_lshl_b32 s35, s43, 10
    s_add_u32 s33, s33, s35""")
    rot_bases(a, 55296, O['HF'])
    X = x_loads(a, 1, 1024, 7, 176)
    wait_x(a, 1)
    stamp(a, "f1_0")
    X.pop(a, 10)
    f1 = Fill(); stats_fill(f1); f1(f"v_mul_f32 v233, {f32(-LOG2E)}, v232\nv_mov_b32 v232, v225")
    f = Fill(); f.gap(32)
    for lt in range(4):
        g = 16+16*lt; u = g+8; t = 160
        for r in range(8): f(f"v_mul_f32 v{t+r}, v{g+r}, v233\nv_mul_f32 v{g+r}, v{g+r}, v{u+r}")
        for r in range(8): f(f"v_exp_f32 v{t+r}, v{t+r}")
        for r in range(8): f(f"v_fma_f32 v{t+r}, v{t+r}, v232, v232")
        for r in range(8): f(f"v_rcp_f32 v{t+r}, v{t+r}")
        for r in range(8): f(f"v_mul_f32 v{g+r}, v{g+r}, v{t+r}")
        for i in range(4): f(f"v_cvt_pk_bf16_f32 v{u+i}, v{g+2*i}, v{g+2*i+1}")
        f.vm(f"buffer_store_dwordx4 {vr(u)}, v9, {WS}, s42 offen offset:{lt*512} sc1", "he")
    steps = []
    for lts in ((0, 1, 2, 3), (4, 5, 6)):
        for ks in range(40):
            for lt in lts:
                q = Y.w13_seq(lt, ks)
                steps.append(((((q//20)+4) % 8)*20480+(q % 20)*1024, 16+16*lt, ks))
    W = Loads()
    for ks in range(CFG["w2e"], 4): w2_loads(W, ks)
    done11 = []
    def pre(i):
        if i % 20 == 0:
            s = i//20
            if s == 0 or 2 <= s < 8: a("s_barrier")
            elif s >= 8: assert not Q.q; a.vwait(f"s{s}"); a("s_barrier")
            if 2 <= s < 8: w13_stage(Q, s+6)
    def post(i):
        if i in CFG["fst"]: stamp(a, f"f{i}")
        if i % 2 == 0:
            if X.q and (i % 4 == 0 or not Q.q): X.pop(a)
            elif Q.q: Q.pop(a)
            else: W.pop(a)
        elif 120 <= i < 160: f1.emit(a, 12)
        if i == 159:
            f1.flush(a); a.vwait("cs")
            for t in range(4): csfix(a, 16+16*t, 176+2*t)
        if i >= 160:
            f.emit(a, 12 if i % 2 == 0 else 22)
            if (i-160) % 15 == 14 and (i-160)//15 < 6: w2_loads(W, 5+(i-160)//15)
            if not f.q and not done11: done11.append(i); w2_loads(W, 11)
            if i == CFG["hsig"]: assert done11; signal(a, 6, "he")
            if i == CFG["hpeek"]: peek_k(a, 6)
    gemm(a, steps, 128, pre, post)
    print("ffn1: epilogue done at", done11, "W left", len(W.q))
    for t in range(4, 7): csfix(a, 16+16*t, 176+2*t)
    assert not W.q
    a("s_barrier")
    stamp(a, "f1E")
    check(a, "0xff")
    stamp(a, "heP")
    free = [ar(r) for r in range(120, 160, 4)]+[ar(r) for r in range(240, 256, 4)]+[vr(r) for r in (212, 216, 220, 76)]+[vr(r) for r in range(168, 192, 4)]
    order = [(ks, tt) for ks in range(10) for tt in range(4)]+[(ks, tt) for tt in range(4) for ks in range(10, 14)]
    pend = list(order); slot = {}; st = dict(late=False)
    w2_loads(W, 12); w2_loads(W, 13)
    WQ = wq_loads(a, 0, True)
    def issue():
        if pend and pend[0][0] >= 8 and not st["late"]:
            if W.q: W.pop(a)
            elif len(WQ.q) > CFG['wqk']: WQ.pop(a)
            return
        if not pend:
            if len(WQ.q) > CFG['wqk']: WQ.pop(a)
            return
        if not free: return
        ks, tt = pend.pop(0); slot[ks, tt] = free.pop(0)
        if ks % 4 == 0 and ks: a(f"s_add_u32 s{44+tt}, s{44+tt}, 4096")
        if ks == 12: a(f"s_add_u32 s{44+tt}, s{44+tt}, s53")
        a.vm(f"buffer_load_dwordx4 {slot[ks, tt]}, v1, {WS}, s{44+tt} offen offset:{(ks%4)*1024} sc1", f"h{ks}_{tt}")
    for lt in range(4, 7):
        g = 16+16*lt; u = g+8; t = 160
        issue()
        for r in range(0, 8, 2):
            a(f"v_pk_mul_f32 {vr(t+r,2)}, {vr(g+r,2)}, v[232:233] op_sel:[0,1] op_sel_hi:[1,1]")
            a(f"v_pk_mul_f32 {vr(g+r,2)}, {vr(g+r,2)}, {vr(u+r,2)}")
        issue()
        for r in range(8): a(f"v_exp_f32 v{t+r}, v{t+r}")
        issue()
        for r in range(0, 8, 2):
            a(f"v_pk_fma_f32 {vr(t+r,2)}, {vr(t+r,2)}, v[232:233], v[232:233] op_sel_hi:[1,0,0]")
        issue()
        for r in range(8): a(f"v_rcp_f32 v{t+r}, v{t+r}")
        issue()
        for r in range(0, 8, 2): a(f"v_pk_mul_f32 {vr(g+r,2)}, {vr(g+r,2)}, {vr(t+r,2)}")
        for i in range(4): a(f"v_cvt_pk_bf16_f32 v{u+i}, v{g+2*i}, v{g+2*i+1}")
    for lt in range(4, 7):
        if lt == 6: a(f"s_cmp_ge_u32 s{sC}, 12\ns_cselect_b32 s51, 0x7fff0000, s51")
        a.vm(f"buffer_store_dwordx4 {vr(24+16*lt)}, v9, {WS}, s51 offen offset:{(lt-4)*512} sc1", "hl")
    free += [vr(160), vr(164)]
    stamp(a, "f1Ep")
    n = 0; f = Fill()
    for e, (ks, tt) in enumerate(order):
        if e == CFG["lsig"]: signal(a, 2, "hl")
        if e == CFG["lpeek"]: peek_k(a, 2)
        if e == CFG["lpoll"]:
            assert pend[0][0] == 8 and not W.q
            check(a, "0xff"); stamp(a, "hlP"); st["late"] = True
            for _ in range(3): issue()
        a.vwait(f"W{ks}"); a.vwait(f"h{ks}_{tt}")
        for nt in range(5):
            acc = vr(80+tt*20+nt*4)
            a(f"{M16} {acc}, {w2frag(ks, nt)}, {slot[ks, tt]}, {'0' if ks==0 else acc}")
            if n % 4 == 0: issue()
            n += 1
            f.emit(a, 8)
        free.append(slot[ks, tt])
        if tt == 3: free += [w2frag(ks, nt) for nt in range(5)]
        if ks == 13:
            assert not f.q
            if tt < 3: f = part_fill(tt, 80, 102400)
    stamp(a, "f2E")
    n_epilogue(a, 2, True, 80, 16, 102400, WQ)
    stamp(a, "f2Ep")
    signal(a, 3)
    WQ.flush(a)

def gen_main(a, name):
    a(f".globl {name}\n.p2align 8\n.type {name},@function\n{name}:")
    a("s_cmp_ge_u32 s2, 256\ns_cbranch_scc1 L_end")
    a("s_load_dwordx16 s[64:79], s[0:1], 0\ns_load_dwordx4 s[4:7], s[0:1], 64\ns_memrealtime s[26:27]")
    a(f"v_lshrrev_b32 v1, 6, v0\nv_and_b32 v5, 63, v0\nv_readfirstlane_b32 s{sW}, v1")
    if CFG["map"] == "pair":
        a(f"s_bfe_u32 s30, s2, 0x20001\ns_lshl_b32 s30, s30, 2\ns_lshr_b32 s31, s2, 6\ns_add_u32 s{sI}, s30, s31\ns_and_b32 s30, s2, 1\ns_lshl_b32 s30, s30, 3\ns_bfe_u32 s31, s2, 0x30003\ns_add_u32 s{sC}, s30, s31")
    else:
        a(f"s_and_b32 s30, s2, 7\ns_lshl_b32 s30, s30, 1\ns_lshr_b32 s31, s2, 7\ns_add_u32 s{sI}, s30, s31\ns_bfe_u32 s{sC}, s2, 0x40003")
    a(f"s_lshr_b32 s30, s{sC}, 3\ns_lshl_b32 s30, s30, 2\ns_and_b32 s31, s{sC}, 3\ns_add_u32 s{sJ}, s30, s31\ns_bfe_u32 s{sTH}, s{sC}, 0x10002\ns_mov_b32 s{sL}, 0")
    a(f"""s_lshl_b32 s30, s{sC}, 2
    s_add_u32 s30, s30, s{sW}
    s_lshl_b32 s{sFO}, s30, 7
    s_mul_i32 s43, s{sW}, 14
    s_mul_i32 s33, s{sJ}, 54
    s_add_u32 s33, s33, s43
    s_mul_i32 s52, s33, 5120
    s_add_u32 s52, s52, {O['W2F']}
    s_cmp_ge_u32 s{sW}, 3
    s_cselect_b32 s53, 0x40000000, 0""")
    a("""v_lshlrev_b32 v1, 4, v5
    v_add_u32 v2, 0x10000, v1
    v_add_u32 v3, 0x20000, v1
    v_mov_b32 v4, 0
    v_and_b32 v6, 32, v5
    v_lshlrev_b32 v6, 1, v6
    v_and_b32 v7, 31, v5
    v_lshlrev_b32 v7, 3, v7
    v_lshl_add_u32 v7, v6, 10, v7
    v_and_b32 v14, 15, v5
    v_bfe_u32 v15, v5, 4, 1
    v_lshlrev_b32 v8, 2, v6
    v_lshl_add_u32 v8, v14, 4, v8
    v_mul_u32_u24 v9, 55296, v15
    v_add_u32 v9, v9, v8
    v_mul_u32_u24 v15, 20480, v15
    v_add_u32 v8, v8, v15
    v_lshrrev_b32 v15, 4, v5
    v_lshlrev_b32 v10, 9, v15
    v_lshl_add_u32 v10, v14, 4, v10
    v_lshlrev_b32 v11, 3, v6
    v_lshl_add_u32 v11, v14, 4, v11
    v_and_b32 v12, 16, v5
    v_lshrrev_b32 v12, 1, v12
    v_add_u32 v11, v11, v12
    v_mul_u32_u24 v13, 1280, v14
    v_lshl_add_u32 v12, v15, 4, v13
    v_lshl_add_u32 v13, v15, 3, v13
    s_waitcnt lgkmcnt(0)""")
    a(f"s_mov_b32 s8, s6\ns_mov_b32 s9, s7\ns_mov_b32 s10, {Y.WS_USED}\ns_mov_b32 s11, 0x20000\ns_mov_b32 s12, s78\ns_mov_b32 s13, s79\ns_mov_b32 s14, {2048*1280}\ns_mov_b32 s15, 0x20000")
    stamp(a, "start")
    a(f"s_mul_i32 s40, s{sC}, 286720\ns_mul_i32 s41, s{sW}, 5120\ns_add_u32 s40, s40, s41\ns_add_u32 s40, s40, {O['W13F']}")
    a(f"""s_mov_b32 s84, s4
    s_mov_b32 s85, s5
    s_mov_b32 s86, 256
    s_mov_b32 s87, 0x20000
    s_or_b32 s30, s2, s{sW}
    s_cbranch_scc1 L_nn
    s_or_b32 s26, s26, 1
    v_mov_b32 v14, s26
    buffer_store_dword v14, v4, s[84:87], 0 offen sc1
    L_nn:
    s_mov_b32 s80, s64
    s_mov_b32 s81, s65
    s_mov_b32 s82, {2048*1280}
    s_mov_b32 s83, 0x20000
    s_lshl_b32 s88, s{sI}, 4
    s_add_u32 s88, s88, s{sC}
    s_mul_i32 s88, s88, 3072
    s_add_u32 s88, s88, {O['CSW']}
    s_lshl_b32 s36, s{sI}, 3
    s_lshl_b32 s37, s{sTH}, 2
    s_add_u32 s36, s36, s37
    s_add_u32 s36, s36, s{sW}
    s_mul_i32 s89, s36, 20480
    s_mul_i32 s37, s{sJ}, 160
    s_add_u32 s89, s89, s37""")
    def nonce_wait():
        a(f"""buffer_load_dwordx4 v[110:113], v12, s[80:83], s89 offen
        buffer_load_dwordx4 v[114:117], v12, s[80:83], s89 offen offset:64
        buffer_load_dwordx2 v[118:119], v13, s[80:83], s89 offen offset:128
        s_mov_b32 s32, 0x40000
        L_nw:
        buffer_load_dword v14, v4, s[84:87], 0 offen sc1
        s_sub_u32 s32, s32, 1
        s_cbranch_scc1 L_nd
        s_waitcnt vmcnt(0)
        v_readfirstlane_b32 s25, v14
        s_cmp_eq_u32 s25, 0
        s_cbranch_scc1 L_nw
        L_nd:""")
        stamp(a, "p1")
    prep2.gen(a, sI, sC, sW, sJ, sTH, nonce_wait)
    stamp(a, "p2")
    a(f"""s_lshl_b32 s30, s{sI}, 4
    s_lshl_b32 s31, s{sW}, 2
    s_add_u32 s30, s30, s31
    s_sub_u32 s30, s30, 16
    v_lshl_add_u32 v225, v5, 4, s{sC}
    v_add_u32 v224, s30, v5
    v_cmp_gt_u32 vcc, 16, v5
    v_cndmask_b32 v225, v224, v225, vcc
    v_lshlrev_b32 v225, 9, v225
    s_mov_b32 s24, {O['PFLAG']}""")
    peek(a, "0xfffff")
    for i in range(10): a(f"v_lshlrev_b32 v{RES+2*i}, 16, v{110+i}\nv_and_b32 v{RES+2*i+1}, 0xffff0000, v{110+i}")
    a("v_and_b32 v14, 31, v5\nv_lshrrev_b32 v15, 4, v6\nv_sub_u32 v14, v14, v15")
    for r in range(16): a(f"v_cmp_le_i32 {msk(r)}, {8*(r>>2)+(r&3)}, v14")
    check(a, "0xfffff")
    a("s_barrier"); prep2.wgflag(a, 1, sI, sC, sW, "PF2")
    stamp(a, "p3")
    cs_issue(a, 0, 16)
    W = wq_loads(a, 0, False); W.pop(a, 12)
    a.vwait("csp"); cs_fin(a, 0, 16, "wq")
    W.flush(a); wq_loads(a, 1, False).flush(a)
    a("L_layer:")
    phase_qkv(a); phase_attn(a); phase_wo(a); phase_ffn1(a)
    a("s_barrier")
    wq_loads(a, 1, False).flush(a)
    a(f"s_mov_b32 s{sL}, 1")
    wait_x(a, 3, 1)
    stamp(a, "start")
    a("s_branch L_layer")
    a(f"""L_final:
    buffer_store_dwordx4 v[160:163], v12, {OUT}, s89 offen
    buffer_store_dwordx4 v[164:167], v12, {OUT}, s89 offen offset:64
    buffer_store_dwordx2 v[168:169], v13, {OUT}, s89 offen offset:128""")
    stamp(a, "end")
    a("L_end:\ns_endpgm")
    attn_slow(a)
    if CFG["ts"]: a("; STAMPS "+" ".join(STN))
```

```python
from asmlib import *
import layout as Y
O = Y.off
WS = "s[8:11]"
assert all((r*137)>>11 == r//15 for r in range(75)) and all((r*52)>>8 == r//5 for r in range(15)) and all((r*147)>>11 == r//14 for r in range(70))
assert all((r*205)>>11 == r//10 for r in range(116)) and all((r*205)>>10 == r//5 for r in range(80))
def lut(sec, hb):
    w = 0
    for dc in range(5):
        g, t, m = Y.qkv_chunk(sec*160+hb*5+dc); w |= (t*8+m//4) << (5*dc)
    return w
def srd(a, lo, n): a(f"s_mov_b32 s36, s{lo}\ns_mov_b32 s37, s{lo+1}\ns_mov_b32 s38, {n}\ns_mov_b32 s39, 0x20000")
def loads8(a, stride, A, B, L):
    a(f"s_cbranch_execz {L}\ns_mov_b32 s33, {stride}\ns_mov_b32 s34, {2*stride}\ns_mov_b32 s35, {3*stride}")
    for r in range(8): a(f"buffer_load_dwordx4 {vr(32+4*r)}, v{A if r < 4 else B}, s[36:39], {('0','s33','s34','s35')[r & 3]} offen")
    a(f"{L}:")
def xpose(a, d0, d1, lds):
    for i in range(8): a(f"v_mov_b32 v{20+i}, 0")
    for i in range(8):
        o = 64+4*i
        for p in range(4): a(f"v_perm_b32 v{o+p}, v{32+(2*p+1)*4+(i>>1)}, v{32+2*p*4+(i>>1)}, s{28+(i&1)}")
        a(f"ds_write_b128 v{(d0, d1)[i>>2]}, {vr(o)} offset:{(i&3)*16}")
    for p in range(4):
        for i in range(8): a(f"v_dot2c_f32_bf16 v{20+i}, s27, v{64+i*4+p}")
    a(f"ds_write_b128 v28, v[20:23] offset:{lds}\nds_write_b128 v28, v[24:27] offset:{lds+16}")
def csred(a, n, lds, c0, c1):
    for k in range(1, 5): a(f"ds_read_b128 {vr(56+8*k)}, v28 offset:{lds+k*n*32}\nds_read_b128 {vr(60+8*k)}, v28 offset:{lds+k*n*32+16}")
    a("s_waitcnt lgkmcnt(0)")
    for k in range(1, 5):
        for r in range(0, 8, 2): a(f"v_pk_add_f32 {vr(20+r,2)}, {vr(20+r,2)}, {vr(56+8*k+r,2)}")
    a(f"buffer_store_dwordx4 v[20:23], v{c0}, {WS}, 0 offen sc1\nbuffer_store_dwordx4 v[24:27], v{c1}, {WS}, 0 offen sc1")
def wgflag(a, kind, sI, sC, sW, L):
    a(f"""s_cmp_lg_u32 s{sW}, 0
    s_cbranch_scc1 {L}
    s_lshl_b32 s30, s{sI}, 13
    s_lshl_b32 s31, s{sC}, 9
    s_add_u32 s30, s30, s31
    s_add_u32 s30, s30, {O['PFLAG']+kind*128}
    v_mov_b32 v14, s25
    s_mov_b64 exec, 1
    buffer_store_dword v14, v4, {WS}, s30 offen sc1
    s_mov_b64 exec, -1
    {L}:""")
def gen(a, sI, sC, sW, sJ, sTH, nonce_wait):
    a("s_mov_b32 s28, 0x05040100\ns_mov_b32 s29, 0x07060302\ns_mov_b32 s27, 0x3f803f80")
    a(f"s_lshl_b32 s30, s{sC}, 4\ns_add_u32 s30, s30, s{sI}\ns_mul_i32 s44, s30, 1408\ns_add_u32 s44, s44, {O['CSP']}\ns_mul_i32 s45, s{sI}, 5")
    a(f"v_lshlrev_b32 v28, 5, v0\nv_mov_b32 v100, 0x7fffff00\nv_mov_b32 v101, 0x7fffff00\ns_cmp_eq_u32 s{sW}, 3\ns_cbranch_scc1 PX")
    srd(a, 66, 640*3840)
    a(f"""v_mul_u32_u24 v16, 137, v0
    v_lshrrev_b32 v16, 11, v16
    v_mul_u32_u24 v17, 15, v16
    v_sub_u32 v17, v0, v17
    v_mul_u32_u24 v18, 52, v17
    v_lshrrev_b32 v18, 8, v18
    v_mul_u32_u24 v19, 5, v18
    v_sub_u32 v19, v17, v19
    v_lshlrev_b32 v29, 11, v16
    v_add_u32 v29, 16384, v29
    v_add_u32 v16, s45, v16
    v_mul_u32_u24 v96, 30720, v16
    v_mul_u32_u24 v97, 1280, v18
    v_lshl_add_u32 v97, v19, 4, v97
    s_mul_i32 s30, s{sC}, 80
    v_add3_u32 v96, v96, v97, s30
    v_add_u32 v97, 15360, v96
    v_cmp_gt_u32 vcc, 75, v0
    s_and_b64 exec, exec, vcc""")
    loads8(a, 3840, 96, 97, "PQ1")
    a("s_mov_b64 exec, -1")
    for q in range(2):
        a(f"v_lshl_add_u32 v20, v19, 1, {q}\nv_cmp_le_u32 vcc, 5, v20\nv_subrev_u32 v21, 5, v20\nv_cndmask_b32 v20, v20, v21, vcc\nv_cndmask_b32 v21, 0, 1, vcc\nv_lshl_add_u32 v21, v18, 1, v21\nv_mov_b32 v22, {lut(0,0)}")
        for wi in range(1, 6): a(f"v_cmp_eq_u32 vcc, {wi}, v21\nv_mov_b32 v23, {lut(wi>>1, wi&1)}\nv_cndmask_b32 v22, v22, v23, vcc")
        a(f"""v_mul_u32_u24 v20, 5, v20
        v_lshrrev_b32 v22, v20, v22
        v_and_b32 v22, 31, v22
        v_lshl_add_u32 v{100+q}, v22, 4, s44
        v_lshl_add_u32 v{98+q}, v22, 6, v29""")
    a("s_branch PR2\nPX:")
    srd(a, 64, 2048*1280)
    a(f"""s_lshl_b32 s30, s{sI}, 4
    s_add_u32 s30, s30, s{sC}
    s_mul_i32 s33, s30, 10240
    v_lshrrev_b32 v16, 3, v5
    v_and_b32 v17, 7, v5
    v_mul_u32_u24 v18, 1280, v17
    v_mul_u32_u24 v19, 160, v16
    v_add_u32 v18, v18, v19""")
    for p in range(10): a(f"buffer_load_dwordx4 {vr(32+p*4)}, v18, s[36:39], s33 offen offset:{p*16}")
    a(f"""s_lshr_b32 s33, s30, 2
    s_mul_i32 s33, s33, 40960
    s_and_b32 s34, s30, 3
    s_lshl_b32 s34, s34, 7
    s_add_u32 s46, s33, s34
    s_add_u32 s46, s46, {O['XF']}
    s_add_u32 s47, s46, 2560
    s_lshl_b32 s48, s30, 6
    s_add_u32 s48, s48, {O['ST']}
    v_mul_u32_u24 v98, 5120, v16
    v_lshl_add_u32 v98, v17, 4, v98
    v_lshlrev_b32 v99, 14, v16
    v_lshl_add_u32 v99, v17, 3, v99
    PR2:""")
    a(f"""v_cmp_le_u32 vcc, 70, v0
    v_subrev_u32 v16, 70, v0
    v_cndmask_b32 v16, v0, v16, vcc
    v_cndmask_b32 v108, 0, 1, vcc
    v_mul_u32_u24 v109, 147, v16
    v_lshrrev_b32 v109, 11, v109
    v_mul_u32_u24 v17, 14, v109
    v_sub_u32 v17, v16, v17
    v_add_u32 v16, s45, v109
    s_mul_i32 s30, s{sC}, 224
    s_mul_i32 s31, s{sC}, 192
    s_add_u32 s31, s31, 384
    s_min_u32 s30, s30, s31
    v_mul_u32_u24 v102, 27648, v16
    v_lshlrev_b32 v18, 4, v17
    v_add3_u32 v102, v102, v18, s30
    v_add_u32 v103, 13824, v102
    v_lshrrev_b32 v18, 1, v17
    v_and_b32 v19, 1, v17
    v_lshl_add_u32 v19, v108, 2, v19
    v_lshl_add_u32 v106, v18, 3, v19
    v_lshl_add_u32 v106, v106, 4, s44
    v_add_u32 v106, 512, v106
    v_add_u32 v107, 32, v106
    v_mul_u32_u24 v21, 7, v109
    v_add_u32 v21, v21, v18
    v_lshl_add_u32 v21, v21, 3, v19
    v_lshlrev_b32 v104, 6, v21
    v_add_u32 v104, 32768, v104
    v_add_u32 v105, 128, v104
    s_cmp_ge_u32 s{sC}, 12
    s_cselect_b32 s30, 6, 7
    v_cmp_le_u32 vcc, s30, v18
    v_cndmask_b32 v108, v108, 4, vcc
    v_cmp_le_u32 vcc, 140, v0
    s_and_b64 exec, exec, vcc
    s_cbranch_execz PN
    v_subrev_u32 v16, 140, v0
    v_mul_u32_u24 v17, 205, v16
    v_lshrrev_b32 v17, 11, v17
    v_mul_u32_u24 v18, 10, v17
    v_sub_u32 v18, v16, v18
    s_lshl_b32 s30, s{sI}, 1
    s_add_u32 s30, s30, s{sTH}
    v_mul_u32_u24 v21, 1280, v17
    v_add_u32 v21, 51200, v21
    v_lshl_add_u32 v17, v17, 5, s30
    v_mov_b32 v109, 1
    v_mul_u32_u24 v22, 205, v17
    v_lshrrev_b32 v22, 10, v22
    v_mul_u32_u24 v23, 5, v22
    v_sub_u32 v23, v17, v23
    v_mul_u32_u24 v22, 40, v22
    v_lshrrev_b32 v24, 1, v23
    v_mul_u32_u24 v24, 20, v24
    v_and_b32 v25, 1, v23
    v_lshl_add_u32 v24, v25, 2, v24
    v_cmp_eq_u32 vcc, 4, v23
    v_cndmask_b32 v24, v24, 16, vcc
    v_cndmask_b32 v26, 8, 20, vcc
    v_add_u32 v102, v22, v24
    v_add_u32 v103, v102, v26
    v_subrev_u32 v20, 80, v17
    v_lshrrev_b32 v22, 1, v20
    v_mul_u32_u24 v23, 147, v22
    v_lshrrev_b32 v23, 12, v23
    v_mul_u32_u24 v24, 28, v23
    v_sub_u32 v22, v22, v24
    v_cmp_eq_u32 vcc, 3, v23
    v_mov_b32 v26, 86
    v_mov_b32 v27, 128
    v_cndmask_b32 v25, 7, 6, vcc
    v_cndmask_b32 v26, v26, v27, vcc
    v_and_b32 v27, 15, v22
    v_mul_u32_u24 v26, v27, v26
    v_lshrrev_b32 v26, 8, v26
    v_lshl_add_u32 v26, v26, 2, v27
    v_add_u32 v26, 4, v26
    v_lshrrev_b32 v27, 2, v22
    v_mul_u32_u24 v27, v27, v25
    v_and_b32 v25, 3, v22
    v_add_u32 v27, v27, v25
    v_cmp_gt_u32 vcc, 16, v22
    v_cndmask_b32 v26, v26, v27, vcc
    v_add_u32 v26, v26, v24
    v_and_b32 v27, 1, v20
    v_lshl_add_u32 v26, v26, 1, v27
    v_lshlrev_b32 v26, 3, v26
    v_add_u32 v27, 4, v26
    v_cmp_le_u32 vcc, 80, v17
    v_cndmask_b32 v102, v102, v26, vcc
    v_cndmask_b32 v103, v103, v27, vcc
    v_cndmask_b32 v108, 2, 3, vcc
    v_cmp_le_u32 vcc, 296, v17
    v_cndmask_b32 v108, v108, 4, vcc
    s_mul_i32 s30, s{sJ}, 160
    v_lshl_add_u32 v22, v18, 4, s30
    v_mul_u32_u24 v102, 1280, v102
    v_add_u32 v102, v102, v22
    v_mul_u32_u24 v103, 1280, v103
    v_add_u32 v103, v103, v22
    v_lshrrev_b32 v22, 2, v18
    v_lshlrev_b32 v22, 1, v22
    v_and_b32 v23, 3, v18
    v_lshlrev_b32 v24, 1, v23
    v_cmp_le_u32 vcc, 8, v18
    v_mov_b32 v25, 256
    v_cndmask_b32 v23, v23, v24, vcc
    v_cndmask_b32 v25, v25, 64, vcc
    v_lshl_add_u32 v22, v22, 2, v23
    v_lshl_add_u32 v104, v22, 6, v21
    v_add_u32 v105, v104, v25
    PN:
    s_mov_b64 exec, -1""")
    a(f"""v_bfe_u32 v16, v0, 5, 2
    v_lshrrev_b32 v17, 7, v0
    v_add_u32 v17, s45, v17
    v_lshrrev_b32 v18, 1, v17
    v_mul_u32_u24 v19, 20, v16
    v_add3_u32 v19, v19, v18, 60
    v_lshrrev_b32 v20, 1, v16
    v_lshl_add_u32 v20, v18, 1, v20
    v_and_b32 v16, 1, v16
    v_cmp_eq_u32 vcc, 1, v16
    v_cndmask_b32 v19, v20, v19, vcc
    v_cndmask_b32 v16, 2, 1, vcc
    v_and_b32 v17, 1, v17
    v_lshl_add_u32 v19, v19, 1, v17
    v_and_b32 v30, 31, v0
    v_lshl_add_u32 v19, v19, 5, v30
    s_mul_i32 s30, s{sC}, 163840
    s_add_u32 s30, s30, {O['WQ']}
    v_lshl_add_u32 v120, v19, 4, s30
    v_lshl_add_u32 v121, v16, 10, v120
    v_lshl_add_u32 v122, v16, 10, v121
    v_lshlrev_b32 v123, 4, v0
    v_lshrrev_b32 v16, 5, v0
    v_add_u32 v17, 156, v16
    v_cmp_le_u32 vcc, 4, v16
    v_cndmask_b32 v17, v16, v17, vcc
    v_cndmask_b32 v18, 4, 3, vcc
    v_lshlrev_b32 v18, 10, v18
    s_mul_i32 s30, s{sC}, 286720
    s_add_u32 s30, s30, {O['W13F']}
    v_lshl_add_u32 v17, v17, 6, v30
    v_lshl_add_u32 v17, v17, 4, s30
    v_cmp_eq_u32 vcc, 7, v16
    v_mov_b32 v31, 0x70000000
    v_cndmask_b32 v17, v17, v31, vcc""")
    for r in range(5):
        a(f"s_add_u32 s30, s45, {r}\ns_lshr_b32 s31, s30, 1\ns_and_b32 s30, s30, 1\ns_lshl_b32 s30, s30, 9\nv_mad_u32_u24 v{124+r}, v18, s31, v17\nv_add_u32 v{124+r}, s30, v{124+r}")
    a(f"""v_mul_u32_u24 v16, 205, v0
    v_lshrrev_b32 v16, 14, v16
    v_mul_u32_u24 v17, 80, v16
    v_sub_u32 v17, v0, v17
    v_lshrrev_b32 v18, 4, v17
    v_and_b32 v17, 15, v17
    v_lshlrev_b32 v17, 4, v17
    v_lshl_add_u32 v17, v18, 10, v17
    s_lshl_b32 s30, s{sI}, 1
    s_add_u32 s30, s30, s{sTH}
    v_lshl_add_u32 v18, v16, 5, s30
    v_cmp_eq_u32 vcc, 3, v16
    v_mov_b32 v19, 400
    v_cndmask_b32 v18, v18, v19, vcc
    s_and_b32 s30, s30, 3
    s_lshl_b32 s30, s30, 8
    s_mul_i32 s31, s{sJ}, 102400
    s_add_u32 s31, s31, s30
    s_add_u32 s31, s31, {O['WOF']}
    v_add_u32 v19, s31, v17
    s_mul_i32 s31, s{sJ}, 276480
    s_add_u32 s31, s31, s30
    s_add_u32 s31, s31, {O['W2F']-102400}
    v_add_u32 v20, s31, v17""")
    for r in range(4):
        a(f"v_cmp_le_u32 vcc, 80, v18\nv_cndmask_b32 v21, v19, v20, vcc\nv_lshrrev_b32 v22, 2, v18\nv_mul_u32_u24 v22, 5120, v22\nv_add_u32 v21, v21, v22\nv_cmp_le_u32 vcc, 296, v18\nv_cndmask_b32 v{129+r}, v21, v31, vcc\nv_add_u32 v18, 96, v18")
    nonce_wait()
    a(f"s_cmp_eq_u32 s{sW}, 3\ns_cbranch_scc1 PX2\nv_cmp_gt_u32 vcc, 75, v0\ns_and_b64 exec, exec, vcc\ns_cbranch_execz PB1")
    xpose(a, 98, 99, 0)
    a("s_branch PB1\nPX2:\nv_mov_b32 v20, 0\nv_mov_b32 v21, 0")
    for p in range(10):
        a(f"buffer_store_dwordx4 {vr(32+p*4)}, v98, {WS}, s{46+p//5} offen offset:{(p%5)*512} sc1")
        for q in range(4): a(f"v_dot2c_f32_bf16 v20, s27, v{32+p*4+q}\nv_dot2c_f32_bf16 v21, v{32+p*4+q}, v{32+p*4+q}")
    a(f"buffer_store_dwordx2 v[20:21], v99, {WS}, s48 offen sc1")
    a("PB1:\ns_mov_b64 exec, -1\ns_waitcnt lgkmcnt(0)\ns_barrier")
    a("v_cmp_le_u32 vcc, 128, v0\nv_cndmask_b32 v122, v122, v31, vcc")
    for r in range(3): a(f"ds_read_b128 {vr(136+4*r)}, v123 offset:{16384+r*4096}")
    for r in range(3): a(f"s_waitcnt lgkmcnt({2-r})\nbuffer_store_dwordx4 {vr(136+4*r)}, v{120+r}, {WS}, 0 offen sc1")
    a("v_cmp_gt_u32 vcc, 15, v0\ns_and_b64 exec, exec, vcc\ns_cbranch_execz PC1")
    csred(a, 15, 0, 100, 101)
    a("PC1:\ns_mov_b64 exec, -1")
    for cls, lo, n, st in ((0, 72, 640*3456, 3456), (1, 74, 640*3456, 3456), (2, 68, 640*1280, 1280), (3, 76, 1728*1280, 1280)):
        srd(a, lo, n)
        a(f"v_cmp_eq_u32 vcc, {cls}, v108\ns_mov_b64 exec, vcc")
        loads8(a, st, 102, 103, f"PL{cls}")
        a("s_mov_b64 exec, -1")
    a(f"s_waitcnt vmcnt(24)\ns_cmp_eq_u32 s{sW}, 2\ns_cbranch_scc1 PW\ns_waitcnt vmcnt(16)\ns_cmp_eq_u32 s{sW}, 1\ns_cbranch_scc1 PW\ns_waitcnt vmcnt(8)\nPW:")
    a("s_barrier"); wgflag(a, 0, sI, sC, sW, "PF1")
    a("s_waitcnt vmcnt(0)\nv_cmp_gt_u32 vcc, 4, v108\ns_mov_b64 exec, vcc\ns_cbranch_execz PB2")
    xpose(a, 104, 105, 4096)
    a("PB2:\ns_mov_b64 exec, -1\ns_waitcnt lgkmcnt(0)\ns_barrier")
    for r in range(9): a(f"ds_read_b128 {vr(136+4*r)}, v123 offset:{32768+r*3584 if r < 5 else 51200+(r-5)*3840}")
    for r in range(9): a(f"s_waitcnt lgkmcnt({8-r})\nbuffer_store_dwordx4 {vr(136+4*r)}, v{124+r}, {WS}, 0 offen sc1")
    a("v_cmp_gt_u32 vcc, 4, v108\nv_cmp_eq_u32 s[30:31], 0, v109\ns_and_b64 exec, vcc, s[30:31]\ns_cbranch_execz PC2")
    csred(a, 14, 4096, 106, 107)
    a("PC2:\ns_mov_b64 exec, -1")
```

```python
import sys
sys.path.insert(0, "gen")
from asmlib import *
import main_k, hazard
NAME = "interleave_layers__sliding_block__glu_gated_swiglu__prompt"
def build(path, **cfg):
    main_k.CFG.update(cfg)
    a = Asm()
    a("; @launch grid=(256,1,1) block=(256,1,1) lds=163840")
    a('.amdgcn_target "amdgcn-amd-amdhsa--gfx950"\n.text')
    main_k.gen_main(a, NAME+"_kernel")
    a('.section .rodata,"a"')
    a(kdesc(NAME+"_kernel", 512, 256, 100))
    lines, added = hazard.fix(a.L)
    open(path, "w").write("\n".join(lines)+"\n")
    print("wrote", path, "lines", len(lines), "nops added", added)
if __name__ == "__main__":
    build(f"cdna_kernels/{NAME}.s")
    build("diag.s", ts=True)
```
